```python
import torch

def _softmax(x, axis=-1):
    return torch.softmax(x, dim=axis)
def _gelu(x):
    return torch.nn.functional.gelu(x, approximate="tanh")
def _silu(x):
    return torch.nn.functional.silu(x)
def _sigmoid(x):
    return torch.sigmoid(x)
def _layernorm(x, axis=-1, eps=1e-5):
    m = x.mean(dim=axis, keepdim=True)
    v = x.var(dim=axis, keepdim=True, unbiased=False)
    return (x - m) / torch.sqrt(v + eps)
def _scatter_add(tgt, idx, src, axis=0):
    return tgt.clone().index_add_(axis, idx, src)
def _segment_sum(src, seg, n):
    out = torch.zeros((n,) + src.shape[1:], dtype=src.dtype)
    return out.index_add_(0, seg, src)
def _pad(x, pw):
    flat = tuple(v for pair in reversed(pw) for v in pair)
    return torch.nn.functional.pad(x, flat)

kernel_name = 'recurrent_scan__gqa_block_cached__glu_gated_glu__decode'

def setup_inputs():

    _w = (lambda a: (lambda t: t.to(torch.bfloat16) if t.is_floating_point() else t)(torch.as_tensor(a)))
    def _A_setup():
        B, Sq, D = 1, 1, 576
        Hq, Hkv, Sk, Dh = 32, 16, 65536, 128
        assert Hq % Hkv == 0, (Hq, Hkv)
        return {
            "x": _w((lambda *s: torch.randn(*s, dtype=torch.bfloat16) * 0.05)(B, Sq, D)),
            "k_cache": _w((lambda *s: torch.randn(*s, dtype=torch.bfloat16) * 1.6)(B, Hkv, Sk, Dh)),
            "v_cache": _w((lambda *s: torch.randn(*s, dtype=torch.bfloat16) * 0.8)(B, Hkv, Sk, Dh)),
            "wq": _w((lambda *s: torch.randn(*s, dtype=torch.bfloat16) * 1.6)(D, Hq * Dh) * (D ** -0.5)),
            "wo": _w((lambda *s: torch.randn(*s, dtype=torch.bfloat16) * 0.8)(Hq * Dh, D) * ((Hq * Dh) ** -0.5)),
        }
    _A_in = _A_setup()

    def _B_setup():
        B, S, D, F = 1, 1, 576, 4608
        return {
            "x": _w((lambda *s: torch.randn(*s, dtype=torch.bfloat16) * 0.05)(B, S, D)),
            "w_gate": _w((lambda *s: torch.randn(*s, dtype=torch.bfloat16) * 0.8)(D, F)),
            "w_up": _w((lambda *s: torch.randn(*s, dtype=torch.bfloat16) * 0.2)(D, F)),
            "w_down": _w((lambda *s: torch.randn(*s, dtype=torch.bfloat16) * 0.2)(F, D)),
        }
    _B_in = _B_setup()

    return {
        "A_x": _A_in["x"],
        "A_k_cache": _A_in["k_cache"],
        "A_v_cache": _A_in["v_cache"],
        "A_wq": _A_in["wq"],
        "A_wo": _A_in["wo"],
        "B_x": _B_in["x"],
        "B_w_gate": _B_in["w_gate"],
        "B_w_up": _B_in["w_up"],
        "B_w_down": _B_in["w_down"],
    }

def reference(A_x, A_k_cache, A_v_cache, A_wq, A_wo, B_x, B_w_gate, B_w_up, B_w_down):
    def _A_ref(x, k_cache, v_cache, wq, wo):
        B, Sq, D = x.shape
        Hq, Dh = 32, 128
        Hkv = k_cache.shape[1]
        rep = Hq // Hkv
        q = (lambda x, *d: x.permute(*d))((x @ wq).reshape(B, Sq, Hq, Dh), 0, 2, 1, 3)
        k = (lambda x, n, axis: torch.repeat_interleave(x, n, dim=axis))(k_cache, rep, axis=1)
        v = (lambda x, n, axis: torch.repeat_interleave(x, n, dim=axis))(v_cache, rep, axis=1)
        scores = torch.einsum("bhqd,bhkd->bhqk", q, k) * (Dh ** -0.5)
        p = _softmax(scores, axis=-1)
        o = torch.einsum("bhqk,bhkd->bhqd", p, v)
        return (lambda x, *d: x.permute(*d))(o, 0, 2, 1, 3).reshape(B, Sq, Hq * Dh) @ wo

    def _B_ref(x, w_gate, w_up, w_down):
        g = torch.einsum("bsd,df->bsf", x, w_gate)
        u = torch.einsum("bsd,df->bsf", x, w_up)
        h = _sigmoid(g) * u
        return torch.einsum("bsf,fd->bsd", h, w_down)

    x = A_x
    xn = _layernorm(x, axis=-1)
    s = _A_ref(xn, A_k_cache, A_v_cache, A_wq, A_wo)
    g = _silu(_B_ref(xn, B_w_gate, B_w_up, B_w_down))
    return x + s * g
```

```python
import re
import sys

KNAME = "recurrent_scan__gqa_block_cached__glu_gated_glu__decode_kernel"

HEADER = """; Kernarg layout for this problem (96 bytes, ptrs only, base s[0:1]):
"""

DOC = """;
"""

L_QRED = 0
L_GURED = 512
L_CNTQ = 1536
L_CNTG = 1540
L_FLAGQ = 1544
L_TILE = 1548
L_SAME = 1552
L_U = 1592
L_CNTY = 1560
L_CNTF = 1564
L_CNTM = 1568
L_PUB = 1572
L_YRDY = 1576
L_KDONE = 1580
L_TAG = 1556
L_CNTS = 1600
L_MAX = 1584
L_FRED = 0
L_QB = 1792
L_PART = 2560
PART_STRIDE = 1056
L_YRED = 6912
L_YOUT = 7936
L_SC = 8192
L_SRED = 8192 + 16384
LDS_BYTES = 8192 + 16384 + 1024

W_QX = 0
W_EP = 0x8000
W_HX = 0x9000
W_REC1 = 0x10000
W_REC2 = 0x100000
W_MON = 0x150000
MON_STRIDE = 4352
W_SIZE = 0x180000
W_STAMP = 0x30000000

LOG2E = 0x3FB8AA3B
SCALE = 0x3DB504F3
SPIN_MAX = 2000000
SPIN_LDS = 8000000


class Emit:
    def __init__(self):
        self.L = []
        self.n = 0

    def __call__(self, s):
        for line in s.strip().split("\n"):
            line = line.strip()
            m = re.fullmatch(r"s_mov_b64 exec, (0x[0-9a-f]+)", line)
            if m:
                v = int(m.group(1), 16)
                self.L.append(f"    s_mov_b32 exec_lo, {v & 0xffffffff:#x}")
                self.L.append(f"    s_mov_b32 exec_hi, {v >> 32:#x}")
            elif line:
                self.L.append(line if line.endswith(":") else "    " + line)

    def lab(self, p):
        self.n += 1
        return f"L_{p}_{self.n}"

    def text(self):
        return "\n".join(self.L) + "\n"


def vr(a, n):
    return f"v[{a}:{a+n-1}]"


def gen(R=3, E=5, kvfl="nt", wfl="", stamps=0, poll_sleep=0, qsleep=1, fast=1, fsleep=0,
        hg=40, hq=36, h7=42, h8=52, h0=12, kpe=0xaaaa, kpo=0xaaaa, vpe=0xaaaa, vpo=0xaeaa, pin=0x7ff, DK=9, DV=9, vgain=42, vbias=-10, kprio=0, param=0, c4=1, tv=0, tw=0, to=0, epearly=1, psh=2, sred=1, now=0, mb=11, npre=4, exact=0, wfirst=0, nv=0,
        mon=((150, 158), (256, 261), (340, 345), (436, 459), (472, 486)), mgain=42, mbias=-10, bgain=4, bbias=30, mwo=45,
        wt=526, pk=(12, 14, 15, 13, 16, 11, 10, 17, 19, 18), pv=(11, 14, 15, 13, 10, 16, 12, 17, 19, 18)):
    pk, pv = list(pk), list(pv)
    f32 = lambda x: repr(float(x))
    G = dict(mgain=f32(mgain / 128), mbias=f32(mbias), vgain=f32(vgain / 128), vbias=f32(vbias), bgain=f32(bgain / 128), bbias=f32(bbias))
    if param == 2:
        hg, hq, h7, h8, h0 = "s76", "s77", "s78", "s79", "s80"
        mon = [(f"s{72+2*i}", f"s{73+2*i}", t2 >= 256) for i, (t1, t2) in enumerate(mon)]
        G = dict(mgain="s82", mbias="s83", vgain="s84", vbias="s85", bgain="s86", bbias="s87")
        mwo, wt = "s88", "s89"
    else:
        mon = [(t1, t2, t2 >= 256) for t1, t2 in mon]
    gfl = ffl = r2fl = "sc1"
    touch, fin2, gprio, wlate, mglob, layout, b1early, ofl = 0, 1, 0, 1, 0, 1, 0, ""
    A = Emit()
    NST = 14

    def stamp(idx):
        if stamps:
            A(f"s_memrealtime vcc\ns_waitcnt lgkmcnt(0)\nv_writelane_b32 v255, vcc_lo, {2*idx}\nv_writelane_b32 v255, vcc_hi, {2*idx+1}")

    def srd(d, lo, hi, nbytes):
        A(f"s_mov_b32 s{d}, {lo}\ns_mov_b32 s{d+1}, {hi}\ns_mov_b32 s{d+2}, {nbytes}\ns_mov_b32 s{d+3}, 0x20000")

    def dpp(op, d, a, b, ctl, bank="0xf"):
        A(f"{op}_dpp v{d}, v{a}{'' if b is None else f', v{b}'} {ctl} row_mask:0xf bank_mask:{bank}")

    def dpp_add(regs, ctl):
        for r in regs:
            dpp("v_add_f32", r, r, r, ctl)
        if len(regs) < 3:
            A(f"s_nop {2 - len(regs)}")

    def allred_rows(r, t, op):
        A(f"""v_mov_b32 v{t}, v{r}
              s_nop 1
              v_permlane16_swap_b32 v{t}, v{r}
              s_nop 1
              {op} v{r}, v{t}, v{r}
              v_mov_b32 v{t}, v{r}
              s_nop 1
              v_permlane32_swap_b32 v{t}, v{r}
              s_nop 1
              {op} v{r}, v{t}, v{r}""")

    def rne(r):
        A(f"v_cvt_pk_bf16_f32 v{r}, v{r}, v{r}\nv_and_b32 v{r}, 0xffff0000, v{r}")

    def masks(mk, t0, t1, t2):
        A(f"""v_and_b32 v{t0}, 7, v1
              v_lshrrev_b32 v{t1}, 1, v{t0}
              v_and_b32 v{t0}, 1, v{t0}
              v_mov_b32 v{t2}, 0xffff
              v_lshlrev_b32 v{t0}, 4, v{t0}
              v_lshlrev_b32 v{t0}, v{t0}, v{t2}""")
        for d in range(4):
            A(f"v_cmp_eq_u32 vcc, {d}, v{t1}\ns_nop 1\nv_cndmask_b32 v{mk+d}, 0, v{t0}, vcc")

    def epoch():
        A(f"s_load_dword s97, s[26:27], {W_EP}")

    def mism(acc, regs, first=True):
        for k, r in enumerate(regs):
            if k == 0 and first:
                A(f"v_xor_b32 v{acc}, s97, v{r}")
            else:
                A(f"v_bitop3_b32 v{acc}, v{acc}, v{r}, s97 bitop3:0xf6")

    A(".text")
    A(f".globl {KNAME}\n.p2align 8\n.type {KNAME},@function\n{KNAME}:")
    A("s_cmp_ge_u32 s2, 256\ns_cbranch_scc1 L_end")
    A("s_load_dwordx16 s[4:19], s[0:1], 0\ns_load_dwordx8 s[20:27], s[0:1], 64")
    if stamps:
        A("v_mov_b32 v255, 0")
    A("""v_lshrrev_b32 v2, 6, v0
         v_and_b32 v1, 63, v0
         s_and_b32 s28, s2, 7
         v_readfirstlane_b32 s3, v2
         s_lshl_b32 s28, s28, 1
         s_bfe_u32 s29, s2, 0x10003
         s_or_b32 s28, s28, s29
         s_lshr_b32 s29, s2, 4
         s_lshl_b32 s30, s28, 4
         s_or_b32 s30, s30, s29
         s_sub_u32 s98, s29, 8
         s_cselect_b32 s98, -1, s98
         s_sub_u32 s99, s29, 7
         s_cselect_b32 s99, -1, s99""")
    if layout:
        A("s_cmp_lt_u32 s3, 4\ns_cbranch_scc1 L_helper\n@@MAINPRO@@\nL_helper:")
    else:
        A("s_cmp_ge_u32 s3, 4\ns_cbranch_scc1 L_main")

    XA, XB, XR, W0, W1, RAWO, RAWD, HMK, YH = 8, 12, 16, 44, 80, 116, 148, 188, 192
    T, ACC = 228, 236
    A(f"""s_setprio 3
          v_lshrrev_b32 v2, 2, v1
          v_and_b32 v3, 3, v1
          s_mul_i32 s31, s3, 144
          v_add_u32 v4, s31, v2
          v_lshlrev_b32 v5, 4, v1
          v_lshlrev_b32 v6, 1, v4
          v_lshlrev_b32 v7, 13, v4
          v_lshl_add_u32 v7, v3, 4, v7
          v_mul_u32_u24 v224, 9216, v4
          v_lshl_add_u32 v224, v3, 4, v224
          s_lshl_b32 s60, s28, 9
          s_lshl_b32 s61, s98, 6
          s_add_u32 s60, s60, s61""")
    for i in range(9):
        A(f"v_mov_b32 v{XR+i}, 0")
    if b1early:
        A("s_barrier")
    A("s_waitcnt lgkmcnt(0)")
    stamp(0)
    def gu_loads():
        A("""s_mul_i32 s62, s28, 576
             s_lshl_b32 s63, s29, 6
             s_add_u32 s62, s62, s63""")
        for i in range(9):
            A(f"buffer_load_dwordx4 {vr(W0+4*i,4)}, v224, s[20:23], s62 offen {wfl}")
            A(f"buffer_load_dwordx4 {vr(W1+4*i,4)}, v224, s[56:59], s62 offen {wfl}")
            if i < 8:
                A(f"s_add_u32 s62, s62, {16*9216}")

    def wd_loads():
        A(f"""s_lshl_b32 s63, s28, 2
              s_add_u32 s63, s63, s3
              s_lshl_b32 s61, s99, 7
              s_mul_i32 s63, s63, {72*1152}
              s_add_u32 s63, s63, s61
              v_and_b32 v225, 7, v1
              v_lshrrev_b32 v227, 3, v1
              v_mul_u32_u24 v227, {9*1152}, v227
              v_lshl_add_u32 v227, v225, 4, v227""")
        for i in range(9):
            A(f"buffer_load_dwordx4 {vr(RAWD+4*i,4)}, v227, s[44:47], s63 offen offset:{1152*(i%3)} {wfl}")
            if i % 3 == 2 and i < 8:
                A("s_add_u32 s63, s63, 3456")

    def tags():
        srd(52, "s26", "s27", W_SIZE)
        A(f"""s_waitcnt lgkmcnt(0)
              s_add_u32 s97, s97, 9
              s_getreg_b32 s63, hwreg(HW_REG_XCC_ID, 0, 3)
              s_and_b32 s96, s97, 0xfff8
              s_or_b32 s96, s96, s63
              s_lshl_b32 s64, s29, 2
              s_add_u32 s64, s64, s3
              s_cmp_lg_u32 s64, 31
              s_cbranch_scc1 L_nohello
              s_mul_i32 s64, s28, 1152
              v_mov_b32 v226, s96
              v_lshlrev_b32 v225, 2, v1
              s_mov_b64 exec, 0xffffffff
              buffer_store_dword v226, v225, s[52:55], s64 offen offset:{W_QX+1024} sc1
              s_mov_b64 exec, -1
              L_nohello:""")

    def late_srds():
        srd(48, "s12", "s13", 4096 * 1152)
        srd(44, "s20", "s21", 4608 * 1152)
        srd(20, "s16", "s17", 576 * 9216)
        srd(56, "s18", "s19", 576 * 9216)

    srd(40, "s4", "s5", 1152)
    srd(32, "s10", "s11", 576 * 8192)
    epoch()
    A(f"""buffer_load_dwordx4 {vr(XA,4)}, v5, s[40:43], 0 offen
          buffer_load_dwordx4 {vr(XB,4)}, v5, s[40:43], 0 offen offset:1024""")
    for i in range(9):
        A(f"buffer_load_short_d16_hi v{XR+i}, v6, s[40:43], 0 offen offset:{32*i}")
    if wfirst:
        late_srds()
        tags()
    A("s_cmp_eq_u32 s98, -1\ns_cbranch_scc1 L_h_noq")
    for i in range(9):
        A(f"buffer_load_dwordx4 {vr(W0+4*i,4)}, v7, s[32:35], s60 offen {wfl}")
        if i < 8:
            A("s_add_u32 s60, s60, 0x20000")
    bar = "" if b1early else "s_barrier\n"
    if wfirst:
        if wfirst == 1:
            wd_loads()
            A("s_barrier\ns_waitcnt vmcnt(18)\ns_branch L_h_ln\nL_h_noq:")
        else:
            A("s_barrier\ns_waitcnt vmcnt(9)\ns_branch L_h_ln\nL_h_noq:")
        gu_loads()
        A("s_cmp_eq_u32 s99, -1\ns_cbranch_scc1 L_h_nowd")
        wd_loads()
        A("s_barrier\ns_waitcnt vmcnt(27)\ns_branch L_h_ln\nL_h_nowd:\ns_barrier\ns_waitcnt vmcnt(18)")
    else:
        A(bar + "s_waitcnt vmcnt(9)\ns_branch L_h_ln")
        A("L_h_noq:\n" + bar + "s_waitcnt vmcnt(0)")
    A("L_h_ln:")
    if not wfirst:
        tags()
    stamp(1)
    if not wfirst:
        late_srds()
    for k in range(4):
        A(f"v_lshlrev_b32 v{T+2*k}, 16, v{XA+k}\nv_and_b32 v{T+2*k+1}, 0xffff0000, v{XA+k}")
        A(f"v_lshlrev_b32 v{T+8+2*k}, 16, v{XB+k}\nv_and_b32 v{T+8+2*k+1}, 0xffff0000, v{XB+k}")
    A(f"v_add_f32 v8, v{T}, v{T+1}\nv_add_f32 v9, v{T+2}, v{T+3}")
    for k in range(4, 16, 2):
        A(f"v_add_f32 v8, v8, v{T+k}\nv_add_f32 v9, v9, v{T+k+1}")
    A("v_add_f32 v8, v8, v9\ns_nop 1")
    for c in (1, 2, 4, 8):
        dpp_add([8], f"row_ror:{c}")
    allred_rows(8, 9, "v_add_f32")
    A("v_mul_f32 v8, 0x3ae38e39, v8")
    for k in range(16):
        A(f"v_sub_f32 v{T+k}, v{T+k}, v8")
    A(f"v_mul_f32 v10, v{T}, v{T}\nv_mul_f32 v11, v{T+8}, v{T+8}")
    for k in range(1, 8):
        A(f"v_fmac_f32 v10, v{T+k}, v{T+k}\nv_fmac_f32 v11, v{T+8+k}, v{T+8+k}")
    A("""v_cmp_gt_u32 vcc, 8, v1
         s_nop 1
         v_cndmask_b32 v11, 0, v11, vcc
         v_add_f32 v10, v10, v11
         s_nop 1""")
    for c in (1, 2, 4, 8):
        dpp_add([10], f"row_ror:{c}")
    allred_rows(10, 9, "v_add_f32")
    A("v_mul_f32 v10, 0x3ae38e39, v10")
    rne(8)
    rne(10)
    A("v_add_f32 v10, 0x3727c5ac, v10")
    rne(10)
    A("v_sqrt_f32 v10, v10\ns_nop 0")
    rne(10)
    A("v_rcp_f32 v11, v10")
    for i in range(9):
        A(f"v_sub_f32 v{XR+i}, v{XR+i}, v8")
    for i in range(9):
        rne(XR + i)
    for i in range(9):
        A(f"v_mul_f32 v{T+i}, v{XR+i}, v11")
    for i in range(9):
        A(f"v_fma_f32 v{XR+i}, -v{T+i}, v10, v{XR+i}")
    for i in range(9):
        A(f"v_fma_f32 v{XR+i}, v{XR+i}, v11, v{T+i}")
    for i in range(9):
        rne(XR + i)
    A("""v_lshrrev_b32 v12, 4, v1
         v_lshl_add_u32 v12, v3, 3, v12
         v_lshlrev_b32 v12, 2, v12""")

    def gemv32(base, ldsoff, wstride):
        for i in range(9):
            for d in range(4):
                A(f"v_lshlrev_b32 v{T+2*d}, 16, v{base+4*i+d}\nv_and_b32 v{T+2*d+1}, 0xffff0000, v{base+4*i+d}")
            for k in range(8):
                A(f"v_mul_f32 v{ACC+k}, v{T+k}, v{XR}" if i == 0 else f"v_fmac_f32 v{ACC+k}, v{T+k}, v{XR+i}")
        dpp_add([ACC + k for k in range(8)], "row_ror:4")
        dpp_add([ACC + k for k in range(8)], "row_ror:8")
        for k in range(4):
            A(f"v_permlane16_swap_b32 v{ACC+2*k}, v{ACC+2*k+1}")
        for k in range(4):
            A(f"v_add_f32 v{ACC+2*k}, v{ACC+2*k}, v{ACC+2*k+1}")
        A(f"""s_mul_i32 s61, s3, {wstride}
              v_add_u32 v13, s61, v12
              v_permlane32_swap_b32 v{ACC}, v{ACC+2}
              v_permlane32_swap_b32 v{ACC+4}, v{ACC+6}
              s_nop 0
              v_add_f32 v{ACC}, v{ACC}, v{ACC+2}
              v_add_f32 v{ACC+4}, v{ACC+4}, v{ACC+6}
              ds_write_b32 v13, v{ACC} offset:{ldsoff}
              ds_write_b32 v13, v{ACC+4} offset:{ldsoff+16}""")

    def last_arriver(cnt, skip):
        A(f"""v_mov_b32 v13, {cnt}
              v_mov_b32 v14, 1
              s_waitcnt lgkmcnt(0)
              s_mov_b64 exec, 1
              ds_add_rtn_u32 v15, v13, v14
              s_waitcnt lgkmcnt(0)
              v_readfirstlane_b32 s61, v15
              s_mov_b64 exec, -1
              s_cmp_lg_u32 s61, 3
              s_cbranch_scc1 {skip}""")

    def wait_tiles(n, slp):
        l = A.lab("wt")
        A(f"""s_mov_b32 s60, {SPIN_LDS // (1 + slp // 2)}
              {l}:
              ds_read_b32 v15, v14
              s_sub_u32 s60, s60, 1
              s_cselect_b32 s64, 0, {n}
              s_waitcnt lgkmcnt(0)
              v_readfirstlane_b32 s63, v15
              s_cmp_ge_u32 s63, s64
              s_cbranch_scc1 {l}x
              s_sleep {slp}
              s_branch {l}
              {l}x:""")

    def fold_halves(D, P):
        for k in range(4):
            A(f"v_mov_b32 v{P+k}, v{D+k}")
        for k in range(4):
            A(f"v_permlane32_swap_b32 v{P+k}, v{D+k}")
        for k in range(4):
            dpp("v_add_f32", P + k, D + k, P + k, "row_ror:8")

    A("s_cmp_eq_u32 s98, -1\ns_cbranch_scc1 L_hq_done\ns_waitcnt vmcnt(" + ("9)" if wfirst == 1 else "0)"))
    gemv32(W0, L_QRED, 128)
    last_arriver(L_CNTQ, "L_hq_done")
    A(f"""v_and_b32 v13, 31, v1
          v_lshlrev_b32 v13, 2, v13
          ds_read2_b32 v[8:9], v13 offset0:0 offset1:32
          ds_read2_b32 v[10:11], v13 offset0:64 offset1:96
          s_mul_i32 s65, s28, 9
          s_add_u32 s65, s65, s98
          s_lshl_b32 s65, s65, 7
          s_waitcnt lgkmcnt(0)
          v_add_f32 v8, v8, v9
          v_add_f32 v10, v10, v11
          v_add_f32 v8, v8, v10
          v_cvt_pk_bf16_f32 v8, v8, v8
          v_and_b32 v8, 0xffff0000, v8
          v_or_b32 v8, s96, v8
          s_mov_b64 exec, 0xffffffff
          buffer_store_dword v8, v13, s[52:55], s65 offen offset:{W_QX} sc1
          s_mov_b64 exec, -1""")
    stamp(5)
    A("L_hq_done:")
    stamp(3)
    A(("s_cmp_lg_u32" if wfirst else "s_cmp_gt_u32") + " s29, 8\ns_cbranch_scc1 L_h_nogu")
    gu_loads()
    A("L_h_nogu:")
    def wo_loads(va, so):
        for i in range(8):
            A(f"buffer_load_dwordx4 {vr(RAWO+4*i,4)}, {va}, s[48:51], {so} offen {wfl}")
            if i < 7:
                A(f"s_add_u32 {so}, {so}, 4608")

    if wfirst != 1:
        A(f"s_cmp_eq_u32 {'s98' if wfirst else 's99'}, -1\ns_cbranch_scc1 L_h_nowo")
        wd_loads()
    A("L_h_nowo:")
    stamp(2)
    if not c4:
        A.L.append("; waves 0 and 1 wait for one head's q each and stage it in LDS")
        blocks = (4, 32, 64, 80)
        A(f"""s_cmp_gt_u32 s3, 1
              s_cbranch_scc1 L_h_rest
              s_mul_i32 s61, s28, 1152
              s_add_u32 s100, s26, s61
              s_addc_u32 s101, s27, 0
              s_mov_b32 s60, {SPIN_MAX}
              s_mov_b32 s62, 0
              s_cmp_lg_u32 s3, 0
              s_cbranch_scc1 L_c_nohello
              L_c_hello:
              s_load_dwordx4 s[4:7], s[100:101], {W_QX+1024} glc
              s_waitcnt lgkmcnt(0)
              s_xor_b32 s4, s4, s96
              s_xor_b32 s5, s5, s96
              s_xor_b32 s6, s6, s96
              s_xor_b32 s7, s7, s96
              s_or_b32 s4, s4, s5
              s_or_b32 s6, s6, s7
              s_or_b32 s62, s4, s6
              s_and_b32 s61, s62, 0xfff8
              s_cbranch_scc0 L_c_nohello
              s_sleep {qsleep}
              s_sub_u32 s60, s60, 1
              s_cbranch_scc0 L_c_hello
              L_c_nohello:
              s_and_b32 s62, s62, 7
              v_mov_b32 v11, s62
              s_lshl_b32 s61, s3, 9
              s_add_u32 s100, s100, s61
              s_addc_u32 s101, s101, 0
              s_lshl_b32 s61, s3, 8
              v_lshl_add_u32 v10, v1, 1, s61
              L_c_pre:""")
        for u in range(4):
            A(f"s_load_dword s{4+u}, s[100:101], {W_QX+128*u} glc")
        A(f"""s_sub_u32 s60, s60, 1
              s_cbranch_scc1 L_c_poll0
              s_waitcnt lgkmcnt(0)
              s_xor_b32 s4, s4, s96
              s_xor_b32 s5, s5, s96
              s_xor_b32 s6, s6, s96
              s_xor_b32 s7, s7, s96
              s_or_b32 s4, s4, s5
              s_or_b32 s6, s6, s7
              s_or_b32 s4, s4, s6
              s_and_b32 s4, s4, 0xfff8
              s_cbranch_scc0 L_c_poll0
              s_sleep {qsleep}
              s_branch L_c_pre""")
        for rd in range(2):
            A(f"L_c_poll{rd}:\ns_waitcnt lgkmcnt(0)")
            for u in range(4):
                A(f"s_load_dwordx16 s[{blocks[u]}:{blocks[u]+15}], s[100:101], {W_QX+256*rd+64*u} glc")
            A("s_sub_u32 s60, s60, 1\ns_waitcnt lgkmcnt(0)")
            for k in range(64):
                A(f"v_writelane_b32 v8, s{blocks[k//16]+k%16}, {k}")
            A(f"""v_xor_b32 v9, s96, v8
                  v_and_b32 v14, 0xfff8, v9
                  v_cmp_ne_u32 vcc, 0, v14
                  s_cmp_gt_i32 s60, 0
                  s_cselect_b64 s[62:63], vcc, 0
                  s_cmp_lg_u64 s[62:63], 0
                  s_cbranch_scc1 L_c_poll{rd}
                  v_and_or_b32 v11, v9, 7, v11
                  ds_write_b16_d16_hi v10, v8 offset:{L_QB+128*rd}""")
        A(f"""v_mov_b32 v13, {L_FLAGQ}
              v_mov_b32 v14, 1
              ds_or_b32 v13, v11 offset:{L_SAME-L_FLAGQ}
              s_waitcnt lgkmcnt(0)
              s_mov_b64 exec, 1
              ds_add_u32 v13, v14
              s_mov_b64 exec, -1
              L_h_rest:
              s_setprio 0""")
    else:
        A.L.append("; every helper wave fetches 64 columns of the group's q through the scalar path and stages them in LDS")
        blocks = (4, 32, 64, 80)
        A(f"""s_mul_i32 s61, s28, 1152
              s_add_u32 s100, s26, s61
              s_addc_u32 s101, s27, 0
              s_lshl_b32 s62, s3, 8
              s_add_u32 s62, s62, {W_QX}
              s_add_u32 s100, s100, s62
              s_addc_u32 s101, s101, 0
              s_sub_u32 s62, {W_QX + 1024}, s62
              s_mov_b32 s60, {SPIN_MAX}
              s_lshl_b32 s61, s3, 7
              v_lshl_add_u32 v10, v1, 1, s61
              s_branch L_c_poll
              L_c_pre:
              s_sleep {qsleep}
              s_load_dword s4, s[100:101], 0 glc
              s_load_dword s5, s[100:101], 128 glc
              s_sub_u32 s60, s60, 1
              s_cbranch_scc1 L_c_poll
              s_waitcnt lgkmcnt(0)
              s_xor_b32 s4, s4, s96
              s_xor_b32 s5, s5, s96
              s_or_b32 s4, s4, s5
              s_and_b32 s4, s4, 0xfff8
              s_cbranch_scc1 L_c_pre
              L_c_poll:
              s_waitcnt lgkmcnt(0)""")
        for u in range(4):
            A(f"s_load_dwordx16 s[{blocks[u]}:{blocks[u]+15}], s[100:101], {64*u} glc")
        A("s_load_dwordx4 s[20:23], s[100:101], s62 glc\ns_sub_u32 s60, s60, 1\ns_waitcnt lgkmcnt(0)")
        for k in range(64):
            A(f"v_writelane_b32 v8, s{blocks[k//16]+k%16}, {k}")
        A(f"""s_xor_b32 s20, s20, s96
              s_xor_b32 s21, s21, s96
              s_xor_b32 s22, s22, s96
              s_xor_b32 s23, s23, s96
              s_or_b32 s20, s20, s21
              s_or_b32 s22, s22, s23
              s_or_b32 s20, s20, s22
              v_xor_b32 v9, s96, v8
              v_or_b32 v9, s20, v9
              v_and_b32 v14, 0xfff8, v9
              v_cmp_ne_u32 vcc, 0, v14
              s_cmp_gt_i32 s60, 0
              s_cselect_b64 s[4:5], vcc, 0
              s_cmp_lg_u64 s[4:5], 0
              s_cbranch_scc1 L_c_pre
              v_and_b32 v11, 7, v9
              v_mov_b32 v13, {L_FLAGQ}
              v_mov_b32 v14, 1
              v_mov_b32 v9, s97
              ds_write_b16_d16_hi v10, v8 offset:{L_QB}
              ds_write_b32 v13, v9 offset:{L_TAG-L_FLAGQ}
              ds_or_b32 v13, v11 offset:{L_SAME-L_FLAGQ}
              s_waitcnt lgkmcnt(0)
              s_mov_b64 exec, 1
              ds_add_u32 v13, v14
              s_mov_b64 exec, -1
              s_setprio 0""")
    stamp(11)
    masks(HMK, 8, 9, 10)
    A("v_mov_b32 v226, s97\ns_waitcnt vmcnt(0)")
    stamp(4)
    A("s_cmp_gt_u32 s29, 8\ns_cbranch_scc1 L_hg_done")
    gemv32(W0, L_GURED, 256)
    gemv32(W1, L_GURED + 128, 256)
    last_arriver(L_CNTG, "L_hg_done")
    A(f"""v_and_b32 v13, 31, v1
          v_lshlrev_b32 v13, 2, v13
          v_mov_b32 v14, {L_SAME}
          ds_read_b32 v14, v14""")
    for w in range(4):
        A(f"ds_read_b32 v{T+2*w}, v13 offset:{L_GURED+256*w}\nds_read_b32 v{T+2*w+1}, v13 offset:{L_GURED+256*w+128}")
    A(f"""s_mul_i32 s64, s28, 1152
          s_lshl_b32 s65, s29, 7
          s_add_u32 s64, s64, s65
          s_add_u32 s64, s64, {W_HX}
          s_waitcnt lgkmcnt(0)
          v_readfirstlane_b32 s65, v14
          v_add_f32 v8, v{T}, v{T+2}
          v_add_f32 v9, v{T+1}, v{T+3}
          v_add_f32 v10, v{T+4}, v{T+6}
          v_add_f32 v11, v{T+5}, v{T+7}
          v_add_f32 v8, v8, v10
          v_add_f32 v9, v9, v11""")
    rne(8)
    rne(9)
    A(f"""v_mul_f32 v8, 0xbfb8aa3b, v8
          v_exp_f32 v8, v8
          s_nop 0
          v_add_f32 v8, 1.0, v8
          v_rcp_f32 v8, v8
          s_nop 0""")
    rne(8)
    A(f"""v_mul_f32 v8, v8, v9
          v_cvt_pk_bf16_f32 v8, v8, v8
          s_mov_b32 s60, 0xffff
          v_bfi_b32 v8, s60, v226, v8
          s_mov_b64 exec, 0xffffffff
          s_cmp_eq_u32 s65, {0 if fast else -1}
          s_cbranch_scc1 L_h_plain
          buffer_store_dword v8, v13, s[52:55], s64 offen sc1
          s_branch L_h_stored
          L_h_plain:
          buffer_store_dword v8, v13, s[52:55], s64 offen
          L_h_stored:
          s_mov_b64 exec, -1
          L_hg_done:""")
    MU, PB, D = 8, 28, 36
    A(f"""s_cmp_eq_u32 s99, -1
          s_cbranch_scc1 L_hy_done
          s_mul_i32 s64, s28, 1152
          s_mul_i32 s65, s3, 288
          s_add_u32 s64, s64, s65
          s_add_u32 s64, s64, {W_HX}
          v_lshrrev_b32 v4, 3, v1
          v_mul_u32_u24 v4, 36, v4
          s_mov_b32 s60, {SPIN_MAX}
          L_y_poll:
          buffer_load_dwordx4 v[8:11], v4, s[52:55], s64 offen sc1
          buffer_load_dwordx4 v[12:15], v4, s[52:55], s64 offen offset:16 sc1
          buffer_load_dword v16, v4, s[52:55], s64 offen offset:32 sc1
          s_sub_u32 s60, s60, 1
          s_cbranch_scc1 L_y_ok
          s_waitcnt vmcnt(0)""")
    mism(18, range(8, 17))
    A(f"""v_and_b32 v18, 0xffff, v18
          v_cmp_ne_u32 vcc, 0, v18
          s_cbranch_vccz L_y_ok
          s_sleep 32
          s_branch L_y_poll
          L_y_ok:
          s_mov_b32 s60, 0x03020302
          s_waitcnt vmcnt(0)""")
    for i in range(9):
        A(f"v_perm_b32 v{MU+i}, v{MU+i}, v{MU+i}, s60")
    for i in range(9):
        pb = PB + 4 * (i % 2)
        for d in range(4):
            A(f"v_and_b32 v{pb+d}, v{MU+i}, v{HMK+d}")
        A("s_nop 1")
        A(f"v_mfma_f32_16x16x32_bf16 {vr(D,4)}, {vr(pb,4)}, {vr(RAWD+4*i,4)}, {'0' if i == 0 else vr(D,4)}")
    A(f"""v_and_b32 v6, 7, v1
          v_and_b32 v7, 16, v1
          v_lshl_add_u32 v6, v6, 5, v7
          s_lshl_b32 s61, s3, 8
          v_add_u32 v7, s61, v6
          s_nop 3""")
    fold_halves(D, PB)
    A(f"""s_mov_b64 exec, 0xff00ff
          ds_write_b128 v7, {vr(PB,4)} offset:{L_YRED}
          s_mov_b64 exec, -1""")
    last_arriver(L_CNTY, "L_hy_done")
    for w in range(4):
        A(f"ds_read_b128 {vr(8+4*w,4)}, v6 offset:{L_YRED+256*w}")
    A("s_movk_i32 s60, 0x3ff\ns_waitcnt lgkmcnt(0)")
    for k in range(4):
        A(f"v_add_f32 v{8+k}, v{8+k}, v{12+k}\nv_add_f32 v{16+k}, v{16+k}, v{20+k}\nv_add_f32 v{8+k}, v{8+k}, v{16+k}\nv_bfi_b32 v{YH+k}, s60, v226, v{8+k}")
    A(f"""ds_write_b128 v6, {vr(YH,4)} offset:{L_YOUT}
          v_mov_b32 v24, {L_YRDY}
          v_mov_b32 v25, 1
          s_waitcnt lgkmcnt(0)
          ds_write_b32 v24, v25""")
    A("L_hy_done:")
    stamp(12)
    if tv or tw or to:
        A.L.append('; wave 2 touches pages that are first needed later, so their address translations are ready')
        A(f"""s_cmp_lg_u32 s3, 2
              s_cbranch_scc1 L_notouch
              s_load_dwordx2 s[4:5], s[0:1], 16
              s_load_dwordx2 s[8:9], s[0:1], 72
              s_mov_b32 s6, 0x10000000
              s_mov_b32 s7, 0x20000
              s_mov_b32 s10, 1152
              s_mov_b32 s11, 0x20000
              s_lshl_b32 s61, s30, 20
              s_mul_i32 s62, s28, {256*1152}
              v_mov_b32 v8, 0
              s_mov_b64 exec, 1
              s_waitcnt lgkmcnt(0)""")
        if tv:
            A("buffer_load_dword v9, v8, s[4:7], s61 offen nt")
        if tw:
            A(f"buffer_load_dword v10, v8, s[48:51], s62 offen\ns_add_u32 s62, s62, {255*1152}\nbuffer_load_dword v11, v8, s[48:51], s62 offen")
        if to:
            A("buffer_load_dword v12, v8, s[8:11], 0 offen")
        A("s_mov_b64 exec, -1\ns_waitcnt vmcnt(0)\nL_notouch:")
    if param == 2:
        A("s_load_dwordx16 s[72:87], s[24:25], 64\ns_load_dwordx2 s[88:89], s[24:25], 128\ns_waitcnt lgkmcnt(0)")
    if mon:
        A.L.append("; wave 3 compares this workgroup's pace with its neighbours' and lets a late one use the cheaper K requests")
        A(f"""s_cmp_lg_u32 s3, 3
              s_cbranch_scc1 L_mon_done
              s_setprio 3
              v_mov_b32 v14, {L_TILE}
              s_and_b32 s65, s2, 7
              s_mul_i32 s65, s65, {MON_STRIDE}
              s_lshr_b32 s61, s2, 3
              s_lshl_b32 s61, s61, 2
              s_add_u32 s61, s61, s65
              v_mov_b32 v16, s61
              v_add_u32 v21, s65, v5
              v_cmp_gt_u32 vcc, 8, v1
              v_mov_b32 v22, 0x80000000
              s_mov_b32 s69, 0xffff
              v_cndmask_b32 v21, v22, v21, vcc
              v_lshrrev_b32 v23, 31, v21
              v_mov_b32 v19, 0x44800000
              v_mov_b32 v20, 0xc4800000""")
        if mglob:
            A(f"""v_lshrrev_b32 v21, 3, v1
                  v_mul_u32_u24 v21, {MON_STRIDE}, v21
                  v_and_b32 v22, 7, v1
                  v_lshl_add_u32 v21, v22, 4, v21
                  v_mov_b32 v23, 0""")
        for rd, (t1, t2, inv) in enumerate(mon):
            if param == 2:
                A(f"s_sub_u32 s90, {t1}, 3")
            wait_tiles("s90" if param == 2 else t1 - 3, 32)
            wait_tiles(t1, 1)
            A(f"""s_memrealtime s[66:67]
                  s_and_b32 s61, s97, s69
                  s_waitcnt lgkmcnt(0)
                  s_lshl_b32 s66, s66, 16
                  s_or_b32 s66, s66, s61
                  v_mov_b32 v17, s66
                  s_mov_b32 s61, {W_MON + 128 * rd}
                  s_mov_b64 exec, 1
                  buffer_store_dword v17, v16, s[52:55], s61 offen {'sc1' if mglob == 2 else ''}
                  s_mov_b64 exec, -1""")
            wait_tiles(t2, 8)
            A(f"""buffer_load_dwordx4 v[8:11], v21, s[52:55], s61 offen sc1
                  v_mov_b32 v12, 0
                  v_mov_b32 v13, 0
                  s_waitcnt vmcnt(0)""")
            for k in range(4):
                A(f"""v_subrev_u32 v{8+k}, s66, v{8+k}
                      v_and_or_b32 v18, v{8+k}, s69, v23
                      v_ashrrev_i32 v{8+k}, 16, v{8+k}
                      v_cmp_eq_u32 vcc, 0, v18
                      v_cvt_f32_i32 v{8+k}, v{8+k}
                      v_med3_f32 v{8+k}, v{8+k}, v20, v19
                      v_cndmask_b32 v18, 0, 1.0, vcc
                      v_add_f32 v13, v13, v18
                      v_fmac_f32 v12, v18, v{8+k}""")
            A("s_nop 1")
            for c in (1, 2, 4):
                dpp_add([12, 13], f"row_ror:{c}")
            dpp_add([12, 13], "row_ror:8")
            last = rd == len(mon) - 1
            A(f"""s_cmp_eq_u32 s99, -1
                  s_cselect_b32 s61, 0, {mwo if last else 0}
                  v_cvt_f32_i32 v18, s61
                  ds_read_b32 v15, v14
                  v_rcp_f32 v13, v13
                  s_nop 0
                  v_fma_f32 v12, -v12, v13, v18
                  v_sub_f32 v13, {G["bbias"]}, v12
                  v_add_f32 v12, {G["vbias" if inv else "mbias"]}, v12
                  v_mul_f32 v12, {G["vgain" if inv else "mgain"]}, v12
                  v_mul_f32 v13, {G["bgain"] if inv else 0}, v13
                  v_max_f32 v12, 0, v12
                  v_max_f32 v13, 0, v13
                  v_cvt_u32_f32 v12, v12
                  v_cvt_u32_f32 v13, v13
                  s_waitcnt lgkmcnt(0)
                  v_add_u32 v12, v12, v15
                  v_add_u32 v13, v13, v15
                  {"" if inv else "v_min_u32 v12, 256, v12"}
                  s_mov_b64 exec, 1
                  ds_write_b64 v14, v[12:13] offset:{L_U - L_TILE}
                  s_mov_b64 exec, -1""")
        if touch:
            A(f"""s_lshl_b32 s61, s30, 11
                  s_add_u32 s61, s61, {W_REC1}
                  buffer_load_dwordx4 v[8:11], v5, s[52:55], s61 offen
                  s_mov_b64 exec, 1
                  buffer_load_dwordx4 v[12:15], v5, s[52:55], s61 offen offset:1024
                  s_mov_b64 exec, -1
                  s_waitcnt vmcnt(0)""")
        A("L_mon_done:")
    OT, ML = 12, 8
    A(f"""s_cmp_eq_u32 s99, -1
          s_cbranch_scc1 L_fin
          s_setprio {gprio}
          v_and_b32 v2, 15, v1
          v_lshrrev_b32 v3, 4, v1
          v_lshlrev_b32 v4, 13, v3
          v_and_b32 v5, 3, v1
          v_lshl_add_u32 v5, v5, 11, v4
          v_lshl_add_u32 v4, v2, 4, v4
          s_lshl_b32 s64, s28, 15
          s_add_u32 s64, s64, {W_REC1}
          s_lshr_b32 s61, s3, 1
          s_lshl_b32 s61, s61, 4
          s_add_u32 s62, s64, s61
          s_lshl_b32 s61, s3, 8
          s_add_u32 s64, s64, s61
          s_add_u32 s63, s64, 4096
          s_lshl_b32 s65, s99, 4
          s_add_u32 s65, s65, s28
          s_lshl_b32 s65, s65, 11
          s_add_u32 s65, s65, {W_REC2}
          s_add_u32 s66, s65, s61
          """)
    if wlate:
        A(f"""s_mov_b64 s[68:69], s[62:63]
              s_mov_b32 s70, s64
              v_mov_b32 v14, {L_TILE}
              s_lshl_b32 s31, s28, 2
              s_add_u32 s31, s31, s3
              s_mul_i32 s31, s31, {64*1152}
              s_lshl_b32 s61, s99, 7
              s_add_u32 s31, s31, s61
              v_and_b32 v200, 8, v1
              v_lshl_add_u32 v200, v200, 2, v3
              v_mul_u32_u24 v200, 1152, v200
              v_and_b32 v201, 7, v1
              v_lshl_add_u32 v200, v201, 4, v200""")
        if param == 2:
            A(f"s_sub_u32 s90, {wt}, 6")
        wait_tiles("s90" if param == 2 else wt - 6, 16)
        wait_tiles(wt, 2)
        wo_loads("v200", "s31")
        A("s_mov_b64 s[62:63], s[68:69]\ns_mov_b32 s64, s70")
    A(f"""v_mov_b32 v14, {L_PUB}
          s_mov_b32 s49, {SPIN_LDS}
          L_pub_wait:
          ds_read_b32 v15, v14
          s_sub_u32 s49, s49, 1
          s_cselect_b32 s60, 0, 1
          s_waitcnt lgkmcnt(0)
          v_readfirstlane_b32 s61, v15
          s_cmp_ge_u32 s61, s60
          s_cbranch_scc1 L_pub_ok
          {"" if now else "s_sleep 1"}
          s_branch L_pub_wait
          L_pub_ok:
          s_mov_b32 s49, {SPIN_MAX}
          s_movk_i32 s60, 0x3ff""")
    stamp(6)
    A(f"""L_g_poll:
          buffer_load_dwordx4 {vr(ML,4)}, v5, s[52:55], s62 offen offset:1024 {gfl}
          buffer_load_dwordx4 {vr(OT,4)}, v4, s[52:55], s64 offen {gfl}
          buffer_load_dwordx4 {vr(OT+4,4)}, v4, s[52:55], s64 offen offset:2048 {gfl}
          buffer_load_dwordx4 {vr(OT+8,4)}, v4, s[52:55], s63 offen {gfl}
          buffer_load_dwordx4 {vr(OT+12,4)}, v4, s[52:55], s63 offen offset:2048 {gfl}
          s_sub_u32 s49, s49, 1
          s_cselect_b32 s60, 0, s60
          s_mov_b64 exec, -1
          s_waitcnt vmcnt(4)
          v_xor_b32 v33, s97, v{ML+2}
          v_max_f32_dpp v28, v{ML}, v{ML} quad_perm:[1,0,3,2] row_mask:0xf bank_mask:0xf
          v_bitop3_b32 v33, v33, v{ML+3}, s97 bitop3:0xf6
          s_waitcnt vmcnt(3)
          v_xor_b32 v32, s97, v{OT}
          v_max_f32_dpp v28, v28, v28 quad_perm:[2,3,0,1] row_mask:0xf bank_mask:0xf
          v_bitop3_b32 v32, v32, v{OT+1}, s97 bitop3:0xf6
          v_mov_b32 v29, v28
          v_bitop3_b32 v32, v32, v{OT+2}, s97 bitop3:0xf6
          v_bitop3_b32 v32, v32, v{OT+3}, s97 bitop3:0xf6
          v_permlane16_swap_b32 v29, v28
          s_waitcnt vmcnt(2)
          v_bitop3_b32 v32, v32, v{OT+4}, s97 bitop3:0xf6
          v_max_f32 v28, v28, v29
          v_bitop3_b32 v32, v32, v{OT+5}, s97 bitop3:0xf6
          v_mov_b32 v29, v28
          v_bitop3_b32 v32, v32, v{OT+6}, s97 bitop3:0xf6
          v_bitop3_b32 v32, v32, v{OT+7}, s97 bitop3:0xf6
          v_permlane32_swap_b32 v29, v28
          s_waitcnt vmcnt(1)
          v_bitop3_b32 v32, v32, v{OT+8}, s97 bitop3:0xf6
          v_max_f32 v28, v28, v29
          v_bitop3_b32 v32, v32, v{OT+9}, s97 bitop3:0xf6
          v_sub_f32 v28, v{ML}, v28
          v_bitop3_b32 v32, v32, v{OT+10}, s97 bitop3:0xf6
          v_exp_f32 v28, v28
          v_bitop3_b32 v32, v32, v{OT+11}, s97 bitop3:0xf6
          s_waitcnt vmcnt(0)
          v_bitop3_b32 v32, v32, v{OT+12}, s97 bitop3:0xf6
          v_mul_f32 v30, v28, v{ML+1}
          v_bitop3_b32 v32, v32, v{OT+13}, s97 bitop3:0xf6
          v_bitop3_b32 v32, v32, v{OT+14}, s97 bitop3:0xf6
          v_add_f32_dpp v30, v30, v30 quad_perm:[1,0,3,2] row_mask:0xf bank_mask:0xf
          v_bitop3_b32 v32, v32, v{OT+15}, s97 bitop3:0xf6
          v_or_b32 v32, v32, v33
          v_lshrrev_b32 v33, 10, v33
          v_add_f32_dpp v30, v30, v30 quad_perm:[2,3,0,1] row_mask:0xf bank_mask:0xf
          v_min_u32 v33, s60, v33
          v_and_or_b32 v32, v32, s60, v33
          """)
    if stamps:
        A(f"s_cmp_lg_u32 s49, {SPIN_MAX - 1}\ns_cbranch_scc1 L_g_ns")
        stamp(10)
        A("L_g_ns:")
    A(f"""v_cmp_ne_u32 vcc, 0, v32
          s_and_b64 exec, exec, vcc
          s_cbranch_execz L_g_ok
          {f"s_sleep {poll_sleep}" if poll_sleep else ""}
          s_branch L_g_poll
          L_g_ok:
          s_mov_b64 exec, -1""")
    stamp(7)
    AC = 32
    A("v_mov_b32 v31, v30")
    for t in range(4):
        for k in range(4):
            dpp("v_mul_f32" if t == 0 else "v_fmac_f32", AC + k, 28, OT + 4 * t + k, f"quad_perm:[{t},{t},{t},{t}]")
        if t == 0:
            A("v_permlane16_swap_b32 v31, v30")
        if t == 1:
            A("v_add_f32 v30, v30, v31\nv_mov_b32 v31, v30")
        if t == 2:
            A("v_permlane32_swap_b32 v31, v30")
    A(f"""v_add_f32 v30, v30, v31
          v_permlane16_swap_b32 v{AC}, v{AC+1}
          v_rcp_f32 v30, v30
          v_permlane16_swap_b32 v{AC+2}, v{AC+3}
          v_add_f32 v{AC}, v{AC}, v{AC+1}
          s_nop 0
          v_add_f32 v{AC+2}, v{AC+2}, v{AC+3}
          s_nop 1
          v_permlane32_swap_b32 v{AC}, v{AC+2}
          s_movk_i32 s60, 0x3ff
          v_add_f32 v{AC}, v{AC}, v{AC+2}
          v_mul_f32 v{AC}, v{AC}, v30
          v_cvt_pk_bf16_f32 v{AC}, v{AC}, v{AC}
          s_nop 1""")
    BC, PC, DC = 8, 16, 24

    def bcast(i):
        dpp("v_mov_b32", BC + i, AC, None, f"row_newbcast:{i}", "0x3")
        dpp("v_mov_b32", BC + i, AC, None, f"row_newbcast:{8+i}", "0xc")

    assert not now
    for i in range(8):
        dpp("v_mov_b32", BC + i, AC, None, f"row_newbcast:{i}", "0x3")
    for i in range(8):
        dpp("v_mov_b32", BC + i, AC, None, f"row_newbcast:{8+i}", "0xc")
    stamp(8)
    for d in range(4):
        A(f"v_and_b32 v{PC+d}, v{BC}, v{HMK+d}")
    for i in range(8):
        if i < 7:
            nb = PC + 4 * ((i + 1) % 2)
            A(f"v_and_b32 v{nb}, v{BC+i+1}, v{HMK}\nv_and_b32 v{nb+1}, v{BC+i+1}, v{HMK+1}")
        else:
            A("s_nop 1")
        A(f"v_mfma_f32_16x16x32_bf16 {vr(DC,4)}, {vr(PC+4*(i%2),4)}, {vr(RAWO+4*i,4)}, {'0' if i == 0 else vr(DC,4)}")
        if i < 7:
            A(f"v_and_b32 v{nb+2}, v{BC+i+1}, v{HMK+2}\nv_and_b32 v{nb+3}, v{BC+i+1}, v{HMK+3}")
        if now and i < 6:
            bcast(i + 2)
    A("s_nop 7")
    fold_halves(DC, 28)
    if sred:
        A(f"""s_lshl_b32 s61, s3, 8
              v_add_u32 v7, s61, v6
              v_mov_b32 v13, {L_CNTS}
              v_mov_b32 v14, 1
              s_mov_b64 exec, 0xff00ff
              ds_write_b128 v7, v[28:31] offset:{L_SRED}
              s_mov_b64 exec, 1
              ds_add_rtn_u32 v15, v13, v14
              s_mov_b64 exec, -1
              s_waitcnt lgkmcnt(0)
              v_readfirstlane_b32 s61, v15
              s_cmp_lg_u32 s61, 3
              s_cbranch_scc1 L_fin""")
        for w in range(4):
            A(f"ds_read_b128 {vr(8+4*w,4)}, v6 offset:{L_SRED+256*w}")
        A("""s_mov_b32 s66, s65
             s_waitcnt lgkmcnt(2)
             v_pk_add_f32 v[8:9], v[8:9], v[12:13]
             v_pk_add_f32 v[10:11], v[10:11], v[14:15]
             s_waitcnt lgkmcnt(0)
             v_pk_add_f32 v[16:17], v[16:17], v[20:21]
             v_pk_add_f32 v[18:19], v[18:19], v[22:23]
             v_pk_add_f32 v[28:29], v[8:9], v[16:17]
             v_pk_add_f32 v[30:31], v[10:11], v[18:19]""")
    for k in range(4):
        A(f"v_bfi_b32 v{28+k}, s60, v226, v{28+k}")
    A(f"""s_mov_b64 exec, 0xff00ff
          buffer_store_dwordx4 v[28:31], v6, s[52:55], s66 offen {r2fl}
          s_mov_b64 exec, -1""")
    stamp(9)
    A("s_branch L_fin")

    Q, RING, QP = 16, 64, 12
    S, TT, MK, O, PA = 32, 36, 40, 44, 48
    vL, vM, vMc = 8, 9, 10
    vK, vV, vK2 = 4, 5, 6
    vTK, vONE, vT0, vT1, vSK, vSV, vSA, vV4, vUB = 240, 241, 242, 243, 244, 245, 246, 248, 252
    RT, RO = 208, 224
    CH, INV = 0x100000, 0x200000
    NS = R + E
    assert R <= 4 and NS <= 11 and E <= 7 and RING + 16 * R <= RT

    def pshift(perm, i):
        if param != 1:
            return perm[i]
        A(f"s_bfe_u32 s87, s{(56 if perm is pk else 58) + i // 5}, {(6 << 16) | (6 * (i % 5)):#x}")
        return "s87"

    MB = "s86" if param == 1 else mb

    def rshift(perm, i, real):
        p = pshift(perm, i)
        if not real:
            return p
        if param == 1:
            A("s_cmp_eq_u32 s87, s86\ns_cselect_b32 s87, 20, s87")
            return p
        return 20 if p == mb else p

    def real_off():
        A(f"s_and_b32 s63, s62, {CH - 1}")
        if param == 1 or mb != 20:
            A(f"s_lshr_b32 s50, s63, {MB}\ns_and_b32 s50, s50, 1\ns_lshl_b32 s50, s50, 20\ns_bitset0_b32 s63, {MB}\ns_or_b32 s63, s63, s50")

    def dep2(dst, src, perm, first, real=True):
        A(f"v_and_b32 v{vT0}, 1, v{src}\nv_lshrrev_b32 v{vT1}, 1, v{src}")
        p0 = rshift(perm, 0, real)
        A(f"v_lshlrev_b32 v{dst}, {p0}, v{vT0}" if first else f"v_lshl_add_u32 v{dst}, v{vT0}, {p0}, v{dst}")
        p1 = rshift(perm, 1, real)
        A(f"v_lshl_add_u32 v{dst}, v{vT1}, {p1}, v{dst}")

    A("L_main:")
    mp0 = len(A.L)
    if param == 2:
        A("s_waitcnt lgkmcnt(0)\ns_load_dwordx8 s[76:83], s[24:25], 32\ns_waitcnt lgkmcnt(0)")
    if param == 1:
        A("s_waitcnt lgkmcnt(0)\ns_load_dwordx4 s[56:59], s[24:25], 0\ns_load_dwordx4 s[92:95], s[24:25], 16\ns_load_dword s86, s[24:25], 32\ns_waitcnt lgkmcnt(0)")
    A(f"""v_and_b32 v2, 15, v1
          v_lshrrev_b32 v3, 4, v1
          v_and_b32 v7, 3, v1
          v_bfe_u32 v11, v1, 2, 2""")
    dep2(vK, 11, pk, True)
    A(f"""v_lshl_add_u32 v{vK2}, v3, 6, v{vK}
          v_lshl_add_u32 v{vK2}, v7, 4, v{vK2}
          v_lshl_add_u32 v{vK}, v7, 8, v{vK}
          v_lshl_add_u32 v{vK}, v3, 4, v{vK}
          s_sub_u32 s31, s3, 4
          s_lshr_b32 s60, s30, 1
          s_lshl_b32 s60, s60, 21
          s_and_b32 s61, s30, 1
          s_lshl_b32 s61, s61, {MB}
          s_add_u32 s60, s60, s61
          s_sub_u32 s65, {2 * CH}, s61
          s_mul_i32 s63, s28, 9
          s_add_u32 s63, s63, s29
          s_bfe_u32 s63, s63, 0x30001
          s_cmp_gt_u32 s29, 8
          s_cselect_b32 s63, 0, s63
          s_cmp_eq_u32 s63, 3
          s_cselect_b32 s68, {hg}, 0
          s_and_b32 s63, s28, 1
          s_lshl_b32 s63, s63, 4
          s_sub_i32 s63, s29, s63
          s_cmp_ge_i32 s63, 14
          s_cselect_b32 s63, {hq}, 0
          s_add_u32 s68, s68, s63
          s_cmp_lt_u32 s29, 7
          s_cselect_b32 s63, {h0}, 0
          s_cmp_eq_u32 s29, 7
          s_cselect_b32 s63, {h7}, s63
          s_cmp_eq_u32 s29, 8
          s_cselect_b32 s63, {h8}, s63
          s_add_u32 s68, s68, s63
          s_add_u32 s68, s68, {4*NS+4}
          v_mov_b32 v{vT0}, 0
          v_mov_b32 v{vT1}, {4*NS+4}
          v_mov_b32 v{vTK}, {L_CNTQ}
          v_mov_b32 v7, s68
          v_mov_b32 v{vM}, 0xff7fffff
          ds_write_b32 v{vTK}, v{vT0}
          ds_write_b32 v{vTK}, v{vT0} offset:{L_CNTG-L_CNTQ}
          ds_write_b32 v{vTK}, v{vT0} offset:{L_FLAGQ-L_CNTQ}
          ds_write_b32 v{vTK}, v{vT1} offset:{L_TILE-L_CNTQ}
          ds_write_b32 v{vTK}, v{vT0} offset:{L_SAME-L_CNTQ}
          ds_write_b32 v{vTK}, v7 offset:{L_U-L_CNTQ}
          ds_write_b32 v{vTK}, v{vT0} offset:{L_U+4-L_CNTQ}
          ds_write_b32 v{vTK}, v{vT0} offset:{L_CNTY-L_CNTQ}
          ds_write_b32 v{vTK}, v{vT0} offset:{L_CNTF-L_CNTQ}
          ds_write_b32 v{vTK}, v{vT0} offset:{L_CNTM-L_CNTQ}
          ds_write_b32 v{vTK}, v{vT0} offset:{L_PUB-L_CNTQ}
          ds_write_b32 v{vTK}, v{vT0} offset:{L_YRDY-L_CNTQ}
          ds_write_b32 v{vTK}, v{vT0} offset:{L_KDONE-L_CNTQ}
          ds_write_b32 v{vTK}, v{vT0} offset:{L_CNTS-L_CNTQ}
          ds_write_b32 v{vTK}, v{vM} offset:{L_MAX-L_CNTQ}
          ds_write_b32 v{vTK}, v{vM} offset:{L_MAX+4-L_CNTQ}
          s_waitcnt lgkmcnt(0)""")
    stamp(0)
    A(f"""s_add_u32 s32, s6, s60
          s_addc_u32 s33, s7, 0
          s_mov_b32 s34, s65
          s_mov_b32 s35, 0x20000
          s_add_u32 s36, s8, s60
          s_addc_u32 s37, s9, 0
          s_mov_b32 s38, s65
          s_mov_b32 s39, 0x20000""")
    BAR = len(A.L)

    def tile_addr(k, perm):
        if param == 1:
            A(f"s_lshr_b32 s51, {k}, 8\ns_lshl_b32 s51, s51, 20")
            for i in range(8):
                sh = pshift(perm, 2 + i)
                A(f"s_bfe_u32 s50, {k}, {0x10000 | i:#x}\ns_lshl_b32 s50, s50, {sh}\ns_or_b32 s51, s51, s50")
            A("s_mov_b32 s62, s51")
            return
        groups = {}
        for i, b in enumerate(tuple(perm[2:]) + (20,)):
            groups.setdefault(b - i, 0)
            groups[b - i] |= (1 << i) if i < 8 else 0xff00
        if len(groups) == 1:
            A(f"s_lshl_b32 s62, {k}, {next(iter(groups))}")
            return
        first = True
        for sh, m in groups.items():
            if first:
                A(f"s_and_b32 s50, {k}, {m:#x}\ns_lshl_b32 s51, s50, {sh}")
            else:
                A(f"s_and_b32 s50, {k}, {m:#x}\ns_lshl_b32 s50, s50, {sh}\ns_or_b32 s51, s51, s50")
            first = False
        A("s_mov_b32 s62, s51")

    def kloads(slot, soff, p64=False):
        for c in range(4):
            A(f"buffer_load_dwordx4 {vr(RING+16*slot+4*c,4)}, v{vK2 if p64 else vK}, s[32:35], {soff} offen offset:{(256 if p64 else 64)*c} {kvfl}")

    def vloads(slot, soff, v64=False):
        for i in range(4):
            if v64:
                A(f"buffer_load_dwordx4 {vr(RING+16*slot+4*i,4)}, v{vV4+i}, s[36:39], {soff} offen {kvfl}")
            else:
                A(f"buffer_load_dwordx4 {vr(RING+16*slot+4*i,4)}, v{vV}, s[36:39], {soff} offen offset:{256*i} {kvfl}")

    if param != 1:
        tile_addr("s31", pk)
        real_off()
    A("s_barrier")
    if param == 1:
        for s in range(NS):
            A(f"s_add_u32 s61, s31, {4*s}")
            tile_addr("s61", pk)
            real_off()
            kloads(s, "s63", pin >> s & 1)
            A(f"s_mov_b32 s{40+s if s < R else 10+s-R}, s62")
        A(f"s_add_u32 s61, s31, {4*NS}")
        tile_addr("s61", pk)
    else:
        dense = lambda k: sum((k >> i & 1) << b for i, b in enumerate(pk[2:]))
        real = lambda d: d if mb == 20 else (d & ~(1 << mb)) | (d >> mb & 1) << 20
        A("s_mov_b32 s44, s62\ns_mov_b32 s45, s63")

        def first_loads(lo, hi):
            for s in range(lo, hi):
                if s:
                    A(f"s_or_b32 s63, s45, {real(dense(4 * s)):#x}")
                kloads(s, "s63", pin >> s & 1)
                A(f"s_or_b32 s{40+s if s < R else 10+s-R}, s44, {dense(4 * s):#x}")

        first_loads(0, min(npre, NS))
    pro = A.L[mp0:] + ["    s_branch L_main"]
    del A.L[mp0:]
    at = A.L.index("    @@MAINPRO@@")
    A.L[at:at + 1] = pro
    srd(52, "s26", "s27", W_SIZE)
    masks(MK, 7, 11, 12)
    if not epearly:
        epoch()
    dep2(vV, 3, pv, True)
    dep2(vSK, 3, pk, True, False)
    dep2(vSV, 3, pv, True, False)
    A(f"""v_bfe_u32 v7, v1, 3, 1
          v_lshlrev_b32 v11, 13, v7
          v_lshrrev_b32 v{vSK}, 7, v{vSK}
          v_add_u32 v{vSK}, v{vSK}, v11
          v_lshrrev_b32 v{vSV}, 7, v{vSV}
          v_add_u32 v{vSV}, v{vSV}, v11
          v_lshl_add_u32 v{vV}, v2, 4, v{vV}
          v_lshrrev_b32 v11, 2, v2
          v_lshl_add_u32 v{vV4}, v11, 8, v{vV}
          v_add_u32 v11, 1, v11
          v_and_b32 v11, 3, v11
          v_lshl_add_u32 v{vV4+1}, v11, 8, v{vV}
          v_add_u32 v11, 1, v11
          v_and_b32 v11, 3, v11
          v_lshl_add_u32 v{vV4+2}, v11, 8, v{vV}
          v_add_u32 v11, 1, v11
          v_and_b32 v11, 3, v11
          v_lshl_add_u32 v{vV4+3}, v11, 8, v{vV}
          v_lshlrev_b32 v{vT0}, 8, v7
          v_and_b32 v{vT1}, 0xff, v{vK2}
          v_add_u32 v{vT1}, v{vT0}, v{vT1}
          v_lshl_add_u32 v{vT0}, v3, 4, v{vT0}
          s_getreg_b32 s63, hwreg(HW_REG_XCC_ID, 0, 1)
          s_cmp_eq_u32 s63, 0
          s_mov_b32 s67, {"s93" if param == 1 else kpo}
          s_mov_b32 s69, {"s95" if param == 1 else vpo}
          s_cselect_b32 s67, {"s92" if param == 1 else kpe}, s67
          s_cselect_b32 s69, {"s94" if param == 1 else vpe}, s69
          v_mov_b32 v{vL}, 0
          v_mov_b32 v{O}, 0
          v_mov_b32 v{O+1}, 0
          v_mov_b32 v{O+2}, 0
          v_mov_b32 v{O+3}, 0
          s_mov_b32 s48, {LOG2E}
          s_mov_b32 s49, {SPIN_LDS}
          s_mov_b32 s64, 0
          s_mov_b32 s71, 1
          """)
    for k in range(R):
        A(f"s_mov_b32 s{72+k}, {pin >> k & 1}")
    A(f"""s_nop 0
          s_mov_b32 s84, 0x01010101
          s_mov_b32 s85, s84
          s_mov_b32 s88, 0xff00ff00
          s_mov_b32 s89, s88
          s_mov_b32 s90, 0xf0f0f0f0
          s_mov_b32 s91, s90
          v_mov_b32 v{vONE}, 1""")
    if param != 1:
        first_loads(min(npre, NS), NS)
        A(f"s_or_b32 s62, s44, {dense(4 * NS):#x}")
    stamp(1)
    A(f"""L_mq_lds:
          ds_read_b32 v7, v{vTK} offset:{L_FLAGQ-L_CNTQ}
          s_sub_u32 s49, s49, 1
          s_cselect_b32 s50, 0, {4 if c4 else 2}
          s_waitcnt lgkmcnt(0)
          v_readfirstlane_b32 s63, v7
          s_cmp_ge_u32 s63, s50
          s_cbranch_scc1 L_mq_go
          s_sleep 1
          s_branch L_mq_lds
          L_mq_go:
          {"ds_read_b32 v11, v%d offset:%d" % (vTK, L_TAG - L_CNTQ) if epearly else "s_add_u32 s97, s97, 9"}
          ds_read_b32 v7, v{vTK} offset:{L_SAME-L_CNTQ}""")
    for c in range(4):
        A(f"ds_read_b128 {vr(Q+4*c,4)}, v{vT0} offset:{L_QB+64*c}")
    A(f"""ds_read_b128 {vr(QP,4)}, v{vT1} offset:{L_QB}
          v_mov_b32 v{vTK}, {L_TILE}
          s_waitcnt lgkmcnt(0)
          v_readfirstlane_b32 s70, v7
          {"v_readfirstlane_b32 s97, v11" if epearly else ""}""")
    stamp(3)
    NW = 4 * (R - 1)

    def ticket_stamps(table):
        if stamps:
            for tk, ix in table:
                l = A.lab("tk")
                A(f"s_cmp_lg_u32 s62, {tk}\ns_cbranch_scc1 {l}")
                stamp(ix)
                A(f"{l}:")

    def scores(off):
        A(f"""v_cvt_pk_bf16_f32 v{TT}, v{S}, v{S+1}
              v_cvt_pk_bf16_f32 v{TT+1}, v{S+2}, v{S+3}
              s_lshr_b32 s50, {off}, 7
              v_lshlrev_b32 v{S}, 16, v{TT}
              v_and_b32 v{S+1}, 0xffff0000, v{TT}
              v_lshlrev_b32 v{S+2}, 16, v{TT+1}
              v_and_b32 v{S+3}, 0xffff0000, v{TT+1}""")
        for i in range(4):
            A(f"v_mul_f32 v{S+i}, {SCALE:#x}, v{S+i}")
        A(f"""v_add_u32 v{vSA}, s50, v{vSK}
              v_cvt_pk_bf16_f32 v{TT}, v{S}, v{S+1}
              v_cvt_pk_bf16_f32 v{TT+1}, v{S+2}, v{S+3}
              v_max3_f32 v{vM}, v{vM}, v{S}, v{S+1}
              v_max3_f32 v{vM}, v{vM}, v{S+2}, v{S+3}
              s_mov_b64 exec, s[84:85]
              ds_write_b64 v{vSA}, {vr(TT,2)} offset:{L_SC}
              s_mov_b64 exec, -1""")

    if kprio:
        A(f"s_setprio {kprio}")
    A("L_kloop:")
    for s in range(R):
        K0 = RING + 16 * s
        A(f"""s_cmp_ge_u32 s{40+s}, {CH}
              s_cbranch_scc1 L_venter{s}
              s_mov_b64 exec, 1
              ds_add_rtn_u32 v7, v{vTK}, v{vONE}
              ds_read_b32 v11, v{vTK} offset:{L_U - L_TILE}
              s_mov_b64 exec, -1
              s_mov_b32 s65, s{40+s}
              s_mov_b32 s{40+s}, s62
              """)
        real_off()
        A(f"""s_mov_b32 s66, s{72+s}
              s_mov_b32 s{72+s}, s64
              """)
        if exact:
            A(f"""s_cmp_lg_u32 s71, 0
                  s_cbranch_scc1 L_kw{s}
                  s_waitcnt vmcnt({min(NW, 4 * (DK - 1))})
                  L_kx{s}:
                  s_cmp_lg_u32 s66, 0
                  s_cbranch_scc1 L_qkb{s}""")
        else:
            A(f"""s_cmp_lg_u32 s66, 0
                  s_waitcnt vmcnt({min(NW, 4 * (DK - 1))})
                  s_cbranch_scc1 L_qkb{s}""")
        for c in range(4):
            A(f"v_mfma_f32_16x16x32_bf16 {vr(S,4)}, {vr(K0+4*c,4)}, {vr(Q+4*c,4)}, {'0' if c == 0 else vr(S,4)}")
        A(f"L_qkd{s}:\ns_cmp_lg_u32 s64, 0\ns_cbranch_scc1 L_ldb{s}")
        kloads(s, "s63")
        A(f"""L_ldd{s}:
              s_waitcnt lgkmcnt(0)
              v_readfirstlane_b32 s62, v7
              v_readfirstlane_b32 s68, v11
              s_nop 0""")
        ticket_stamps(((128, 10),))
        A(f"""s_cmp_ge_u32 s62, 256
              s_cbranch_scc1 L_nxv{s}
              s_bfe_u32 s50, s62, {0x40000 | psh:#x}
              s_bitcmp1_b32 s67, s50
              s_cselect_b32 s64, 1, 0
              s_cmp_lt_u32 s62, s68
              s_cselect_b32 s64, 1, s64""")
        tile_addr("s62", pk)
        A(f"""L_nxd{s}:
              s_cmp_lg_u32 s66, 0
              s_cbranch_scc1 L_red{s}
              L_redd{s}:""")
        scores("s65")
    if E:
        A.L.append('; the extra start-up tiles are older than every refill, so they have landed after the first round')
        A("s_cmp_eq_u32 s71, 0\ns_cbranch_scc1 L_kloop\ns_mov_b32 s71, 0")
        for s in range(R, NS):
            K0 = RING + 16 * s
            if exact:
                A(f"s_waitcnt vmcnt({4 * (NS - 1 - s + R)})")
            if pin >> s & 1:
                for c in range(4):
                    A(f"v_mfma_f32_16x16x32_bf16 {vr(PA+4*c,4)}, {vr(K0+4*c,4)}, {vr(QP,4)}, 0")
                A("s_nop 7")
                for c in range(4):
                    dpp("v_mov_b32", S + c, PA + 4 * c, None, "quad_perm:[0,0,0,0]")
                for p in range(1, 4):
                    for c in range(4):
                        dpp("v_add_f32", S + c, PA + 4 * c + p, S + c, f"quad_perm:[{p},{p},{p},{p}]")
            else:
                for c in range(4):
                    A(f"v_mfma_f32_16x16x32_bf16 {vr(S,4)}, {vr(K0+4*c,4)}, {vr(Q+4*c,4)}, {'0' if c == 0 else vr(S,4)}")
                A("s_nop 7")
            scores(f"s{10+s-R}")
    A("s_branch L_kloop")
    for s in range(R):
        K0 = RING + 16 * s
        if exact:
            A(f"L_kw{s}:\ns_waitcnt vmcnt({4 * (NS - 1)})\ns_branch L_kx{s}")
        A(f"L_qkb{s}:")
        for c in range(4):
            A(f"v_mfma_f32_16x16x32_bf16 {vr(PA+4*c,4)}, {vr(K0+4*c,4)}, {vr(QP,4)}, 0")
        A(f"s_branch L_qkd{s}")
        A(f"L_ldb{s}:\ns_cmp_eq_u32 s64, 2\ns_cbranch_scc1 L_ldv{s}")
        kloads(s, "s63", True)
        A(f"s_branch L_ldd{s}\nL_ldv{s}:")
        if kprio:
            A("s_setprio 0")
        vloads(s, "s63")
        A(f"s_branch L_ldd{s}")
        A(f"L_nxv{s}:\ns_mov_b32 s64, 2")
        tile_addr("s62", pv)
        A(f"s_branch L_nxd{s}")
        A(f"L_red{s}:")
        for c in range(4):
            dpp("v_mov_b32", S + c, PA + 4 * c, None, "quad_perm:[0,0,0,0]")
        for p in range(1, 4):
            for c in range(4):
                dpp("v_add_f32", S + c, PA + 4 * c + p, S + c, f"quad_perm:[{p},{p},{p},{p}]")
        A(f"s_branch L_redd{s}")
        A(f"L_venter{s}:\ns_mov_b32 s71, {s}\ns_branch L_venter")
    A("L_venter:")
    stamp(11)
    allred_rows(vM, vT0, "v_max_f32")
    rne(vM)
    A(f"""v_bfe_u32 v{vT0}, v1, 3, 1
          v_lshl_add_u32 v{vT0}, v{vT0}, 2, v{vTK}
          s_mov_b64 exec, 0x101
          ds_max_f32 v{vT0}, v{vM} offset:{L_MAX - L_TILE}
          s_waitcnt lgkmcnt(0)
          s_mov_b64 exec, 1
          ds_add_u32 v{vTK}, v{vONE} offset:{L_KDONE - L_TILE}
          s_mov_b64 exec, -1
          s_mov_b32 s49, {SPIN_LDS}
          L_kdone:
          ds_read_b32 v7, v{vTK} offset:{L_KDONE - L_TILE}
          s_sub_u32 s49, s49, 1
          s_cselect_b32 s50, 0, 4
          s_waitcnt lgkmcnt(0)
          v_readfirstlane_b32 s63, v7
          s_cmp_lt_u32 s63, s50
          s_cbranch_scc1 L_kdone
          ds_read_b32 v{vM}, v{vT0} offset:{L_MAX - L_TILE}
          s_waitcnt lgkmcnt(0)
          v_mul_f32 v{vMc}, s48, v{vM}""")
    stamp(2)
    for s in range(1, R):
        A(f"s_cmp_eq_u32 s71, {s}\ns_cbranch_scc1 L_v{s}")
    A("L_vloop:")
    for s in range(R):
        V0 = RING + 16 * s
        A(f"""L_v{s}:
              s_cmp_ge_u32 s{40+s}, {INV}
              s_cbranch_scc1 L_done
              s_bfe_u32 s50, s{40+s}, {(13 << 16) | 7:#x}
              v_add_u32 v{vSA}, s50, v{vSV}
              ds_read_b64 {vr(TT,2)}, v{vSA} offset:{L_SC}
              s_mov_b64 exec, 1
              ds_add_rtn_u32 v7, v{vTK}, v{vONE}
              ds_read_b64 {vr(vUB,2)}, v{vTK} offset:{L_U - L_TILE}
              s_mov_b64 exec, -1
              s_mov_b32 s{40+s}, s62
              s_cmp_ge_u32 s62, {INV}
              s_cselect_b32 s38, 0, s38
              """)
        real_off()
        A(f"""s_mov_b32 s66, s{72+s}
              s_mov_b32 s{72+s}, s64
              s_mov_b32 s65, s64
              s_waitcnt lgkmcnt(2)
              v_lshlrev_b32 v{S}, 16, v{TT}
              v_and_b32 v{S+1}, 0xffff0000, v{TT}
              v_lshlrev_b32 v{S+2}, 16, v{TT+1}
              v_and_b32 v{S+3}, 0xffff0000, v{TT+1}""")
        for i in range(4):
            A(f"v_fma_f32 v{S+i}, v{S+i}, s48, -v{vMc}")
        for i in range(4):
            A(f"v_exp_f32 v{S+i}, v{S+i}")
        A(f"""s_waitcnt lgkmcnt(0)
              v_readfirstlane_b32 s62, v7
              v_readfirstlane_b32 s68, v{vUB}
              v_readfirstlane_b32 s61, v{vUB+1}""")
        for i in range(4):
            A(f"v_cvt_pk_bf16_f32 v{TT+i}, v{S+i}, v{S+i}")
        A(f"v_add_f32 v{S}, v{S}, v{S+1}\nv_add_f32 v{S+2}, v{S+2}, v{S+3}")
        for i in range(4):
            for d in range(4):
                A(f"v_and_b32 v{PA+4*i+d}, v{TT+i}, v{MK+d}")
        A(f"v_add_f32 v{vL}, v{vL}, v{S}\nv_add_f32 v{vL}, v{vL}, v{S+2}")
        ticket_stamps(((384, 12),))
        A(f"""s_bfe_u32 s50, s62, {0x40000 | psh:#x}
              s_bitcmp1_b32 s69, s50
              s_cselect_b32 s64, 3, 2
              s_cmp_lt_u32 s62, s61
              s_cselect_b32 s64, 3, s64
              s_cmp_lt_u32 s62, s68
              s_cselect_b32 s64, 2, s64""")
        if nv:
            A(f"s_cmp_ge_u32 s62, {nv}\ns_cselect_b32 s64, 2, s64")
        tile_addr("s62", pv)
        A(f"s_cmp_eq_u32 s66, 3\ns_waitcnt vmcnt({min(NW, 4 * (DV - 1))})\ns_cbranch_scc1 L_vr{s}")
        for i in range(4):
            A(f"v_mfma_f32_16x16x32_bf16 {vr(O,4)}, {vr(PA+4*i,4)}, {vr(V0+4*i,4)}, {vr(O,4)}")
        A(f"L_vq{s}:\ns_cmp_eq_u32 s65, 3\ns_cbranch_scc1 L_vs{s}")
        vloads(s, "s63")
        A(f"L_vd{s}:")
    A("s_branch L_vloop")
    for s in range(R):
        V0 = RING + 16 * s
        A(f"L_vs{s}:")
        vloads(s, "s63", True)
        A(f"s_branch L_vd{s}")
        A(f"L_vr{s}:")
        for k in range(4):
            for d in range(4):
                A(f"v_cndmask_b32 v{RT+4*k+d}, v{V0+4*k+d}, v{V0+4*((k-1)&3)+d}, s[90:91]")
        for k in range(4):
            for d in range(4):
                A(f"v_cndmask_b32 v{RO+4*k+d}, v{RT+4*k+d}, v{RT+4*((k-2)&3)+d}, s[88:89]")
        A("s_nop 1")
        for i in range(4):
            A(f"v_mfma_f32_16x16x32_bf16 {vr(O,4)}, {vr(PA+4*i,4)}, {vr(RO+4*i,4)}, {vr(O,4)}")
        A(f"s_branch L_vq{s}")
    A("L_done:")
    stamp(4)
    A(f"""v_mov_b32 v12, v{vL}
          s_mul_i32 s61, s31, {PART_STRIDE}
          v_lshl_add_u32 v16, v1, 4, s61
          v_permlane16_swap_b32 v12, v{vL}
          v_and_b32 v13, 8, v1
          v_add_u32 v13, s61, v13
          v_add_f32 v{vL}, v{vL}, v12
          v_mov_b32 v12, v{vL}
          v_mov_b32 v14, v{vMc}
          ds_write_b128 v16, {vr(O,4)} offset:{L_PART}
          v_permlane32_swap_b32 v12, v{vL}
          v_lshlrev_b32 v16, 4, v1
          v_lshrrev_b32 v17, 5, v1
          v_add_f32 v15, v{vL}, v12
          ds_write_b64 v13, v[14:15] offset:{L_PART+1024}
          v_lshlrev_b32 v14, 3, v17
          v_lshlrev_b32 v12, 9, v17
          v_lshl_add_u32 v12, v2, 5, v12
          v_and_b32 v15, 16, v1
          v_add_u32 v12, v12, v15
          s_lshl_b32 s64, s30, 11
          s_add_u32 s64, s64, {W_REC1}
          s_movk_i32 s60, 0x3ff
          v_mov_b32 v42, s97
          v_mov_b32 v43, s97
          {"" if now else "s_waitcnt lgkmcnt(0)"}
          s_mov_b64 exec, 1
          ds_add_rtn_u32 v7, v{vTK}, v{vONE} offset:{L_CNTM-L_TILE}
          s_mov_b64 exec, -1
          s_waitcnt lgkmcnt(0)
          v_readfirstlane_b32 s61, v7""")
    stamp(5)
    A(f"""s_cmp_eq_u32 s61, 3
          s_cbranch_scc1 L_m_merge
          s_cmp_lg_u32 s61, 0
          s_cbranch_scc1 L_final
          s_cmp_eq_u32 s99, -1
          s_cbranch_scc1 L_final
          s_mov_b32 s49, {SPIN_LDS}
          L_yrdy:
          ds_read_b32 v7, v{vTK} offset:{L_YRDY-L_TILE}
          s_sub_u32 s49, s49, 1
          s_cselect_b32 s50, 0, 1
          s_waitcnt lgkmcnt(0)
          v_readfirstlane_b32 s61, v7
          s_cmp_lt_u32 s61, s50
          s_cbranch_scc1 L_yrdy
          s_mov_b64 exec, 0xffff
          ds_read_b128 v[20:23], v16 offset:{L_YOUT}
          s_lshl_b32 s65, s99, 4
          s_add_u32 s65, s65, s28
          s_lshl_b32 s65, s65, 11
          s_add_u32 s65, s65, {W_REC2}
          s_waitcnt lgkmcnt(0)
          buffer_store_dwordx4 v[20:23], v16, s[52:55], s65 offen offset:1024 sc1
          s_mov_b64 exec, -1
          s_branch L_final
          L_m_merge:""")
    for w in range(4):
        A(f"ds_read_b64 {vr(32+2*w,2)}, v14 offset:{L_PART+1024+PART_STRIDE*w}")
    for w in range(4):
        A(f"ds_read_b128 {vr(20+4*w if w < 3 else 48,4)}, v16 offset:{L_PART+PART_STRIDE*w}")
    A(f"""v_lshlrev_b32 v14, 1, v14
          s_waitcnt lgkmcnt(4)
          v_mov_b32 v40, v32
          v_add_f32 v33, v33, v35
          v_add_f32 v37, v37, v39
          s_waitcnt lgkmcnt(2)
          v_pk_add_f32 v[44:45], v[20:21], v[24:25]
          v_pk_add_f32 v[46:47], v[22:23], v[26:27]
          v_add_f32 v41, v33, v37
          s_waitcnt lgkmcnt(0)
          v_pk_add_f32 v[28:29], v[28:29], v[48:49]
          v_pk_add_f32 v[30:31], v[30:31], v[50:51]
          v_pk_add_f32 v[44:45], v[44:45], v[28:29]
          v_pk_add_f32 v[46:47], v[46:47], v[30:31]""")
    for r in (44, 45, 46, 47):
        A(f"v_bfi_b32 v{r}, s60, v42, v{r}")
    A(f"""s_cmp_eq_u32 s70, {0 if fast else -1}
          s_cbranch_scc1 L_m_plain
          buffer_store_dwordx4 v[44:47], v12, s[52:55], s64 offen sc1
          s_mov_b64 exec, 0x100000001
          buffer_store_dwordx4 v[40:43], v14, s[52:55], s64 offen offset:1024 sc1
          s_branch L_m_pub
          L_m_plain:
          buffer_store_dwordx4 v[44:47], v12, s[52:55], s64 offen
          s_mov_b64 exec, 0x100000001
          buffer_store_dwordx4 v[40:43], v14, s[52:55], s64 offen offset:1024
          L_m_pub:
          ds_write_b32 v{vTK}, v{vONE} offset:{L_PUB-L_TILE}
          s_mov_b64 exec, -1""")
    stamp(8)

    A("L_final:")
    stamp(6)
    if epearly:
        A.L.append('; one spare wave advances the epoch once every workgroup is known to have read it')
        A(f"""s_lshl_b32 s61, s30, 2
              s_add_u32 s61, s61, s31
              s_cmp_lg_u32 s61, {240 * 4}
              s_cbranch_scc1 L_noep
              v_lshlrev_b32 v5, 11, v2
              s_mov_b32 s63, {W_REC2}
              s_mov_b32 s49, {SPIN_MAX}
              L_ep_poll:
              buffer_load_dwordx4 v[8:11], v5, s[52:55], s63 offen offset:1024 sc1
              s_sub_u32 s49, s49, 1
              s_cbranch_scc1 L_ep_ok
              s_waitcnt vmcnt(0)""")
        mism(28, (8, 9, 10, 11))
        A(f"""v_and_b32 v28, 0x3ff, v28
              v_cmp_ne_u32 vcc, 0, v28
              s_cbranch_vccz L_ep_ok
              s_sleep 4
              s_branch L_ep_poll
              L_ep_ok:
              v_mov_b32 v9, s97
              v_mov_b32 v10, {W_EP}
              s_mov_b64 exec, 1
              s_waitcnt vmcnt(0)
              buffer_store_dword v9, v10, s[52:55], 0 offen sc1
              s_mov_b64 exec, -1
              L_noep:""")
    A("s_cmp_lg_u32 s28, s99\ns_cbranch_scc1 L_fin")
    srd(40, "s4", "s5", 1152)
    srd(56, "s22", "s23", 1152)
    if not fin2:
        A(f"""s_lshl_b32 s61, s31, 2
              v_add_u32 v4, s61, v3
              v_lshlrev_b32 v5, 4, v4
              v_lshl_add_u32 v5, v2, 11, v5
              v_and_b32 v7, 3, v2
              v_lshl_add_u32 v6, v4, 2, v7
              s_lshl_b32 s61, s99, 6
              v_add_u32 v6, s61, v6
              v_lshlrev_b32 v6, 1, v6
              v_mov_b32 v26, 0
              s_lshl_b32 s63, s99, 15
              s_add_u32 s63, s63, {W_REC2}
              buffer_load_short_d16_hi v26, v6, s[40:43], 0 offen
              v_cmp_eq_u32 s[44:45], 1, v7
              v_cmp_eq_u32 s[50:51], 2, v7
              v_cmp_eq_u32 s[66:67], 3, v7
              s_mov_b32 s49, {SPIN_MAX}
              L_fy_poll:
              buffer_load_dwordx4 v[8:11], v5, s[52:55], s63 offen offset:1024 sc1
              s_sub_u32 s49, s49, 1
              s_cbranch_scc1 L_fy_ok
              s_waitcnt vmcnt(0)""")
        mism(28, (8, 9, 10, 11))
        A(f"""v_and_b32 v28, 0x3ff, v28
              v_cmp_ne_u32 vcc, 0, v28
              s_and_b64 exec, exec, vcc
              s_cbranch_execz L_fy_ok
              s_sleep 2
              s_branch L_fy_poll
              L_fy_ok:
              s_mov_b64 exec, -1
              s_waitcnt vmcnt(0)""")
        for c in (1, 2, 4, 8):
            dpp_add([8, 9, 10, 11], f"row_ror:{c}")
        A("""v_cndmask_b32 v8, v8, v9, s[44:45]
             v_cndmask_b32 v8, v8, v10, s[50:51]
             v_cndmask_b32 v27, v8, v11, s[66:67]""")
        rne(27)
        A("""v_mul_f32 v13, 0xbfb8aa3b, v27
             v_exp_f32 v13, v13
             s_nop 0
             v_add_f32 v13, 1.0, v13
             v_rcp_f32 v13, v13
             s_nop 0
             v_mul_f32 v27, v27, v13""")
        rne(27)
        stamp(7)
        A(f"""s_mov_b32 s49, {SPIN_MAX}
              L_f_poll:
              buffer_load_dwordx4 v[8:11], v5, s[52:55], s63 offen {ffl}
              buffer_load_dwordx4 v[12:15], v5, s[52:55], s63 offen offset:256 {ffl}
              buffer_load_dwordx4 v[16:19], v5, s[52:55], s63 offen offset:512 {ffl}
              buffer_load_dwordx4 v[20:23], v5, s[52:55], s63 offen offset:768 {ffl}
              s_sub_u32 s49, s49, 1
              s_cbranch_scc1 L_f_ok
              s_waitcnt vmcnt(3)""")
        mism(28, (8, 9, 10, 11))
        A("s_waitcnt vmcnt(2)")
        mism(29, (12, 13, 14, 15))
        A("s_waitcnt vmcnt(1)")
        mism(28, (16, 17, 18, 19), False)
        A("s_waitcnt vmcnt(0)")
        mism(29, (20, 21, 22, 23), False)
        A(f"""v_or_b32 v28, v28, v29
              v_and_b32 v28, 0x3ff, v28
              v_cmp_ne_u32 vcc, 0, v28
              s_and_b64 exec, exec, vcc
              s_cbranch_execz L_f_ok
              {f"s_sleep {fsleep}" if fsleep else ""}
              s_branch L_f_poll
              L_f_ok:
              s_mov_b64 exec, -1
              s_waitcnt vmcnt(0)""")
        stamp(9)
        if stamps:
            A(f"s_sub_u32 s49, {SPIN_MAX}, s49\nv_writelane_b32 v255, s49, 16\nv_writelane_b32 v255, 0, 17")
        for k in (0, 2):
            A(f"v_pk_add_f32 {vr(8+k,2)}, {vr(8+k,2)}, {vr(12+k,2)}\nv_pk_add_f32 {vr(16+k,2)}, {vr(16+k,2)}, {vr(20+k,2)}")
        for k in (0, 2):
            A(f"v_pk_add_f32 {vr(8+k,2)}, {vr(8+k,2)}, {vr(16+k,2)}")
        A("s_nop 0")
        for c in (1, 2, 4, 8):
            dpp_add([8, 9, 10, 11], f"row_ror:{c}")
        A("""v_cndmask_b32 v8, v8, v9, s[44:45]
             v_cndmask_b32 v8, v8, v10, s[50:51]
             v_cndmask_b32 v8, v8, v11, s[66:67]""")
        rne(8)
        A("v_mul_f32 v8, v8, v27")
        rne(8)
        A(f"""v_add_f32 v8, v8, v26
              v_cvt_pk_bf16_f32 v8, v8, v8
              s_mov_b64 exec, 0x000f000f000f000f
              buffer_store_short v8, v6, s[56:59], 0 offen
              s_mov_b64 exec, -1
              s_lshl_b32 s60, s99, 3
              s_add_u32 s60, s60, s3
              s_cmp_lg_u32 s60, 4
              s_cbranch_scc1 L_fin
              v_mov_b32 v9, s97
              v_mov_b32 v10, {W_EP}
              s_mov_b64 exec, 1
              buffer_store_dword v9, v10, s[52:55], 0 offen sc1
              s_mov_b64 exec, -1""")
    else:
        A.L.append('; lane (n, g) handles producer 4 * wave + g and columns 4n..4n+3; column 4n + g after the row reduction')
        def rows4(r):
            A(f"""v_permlane16_swap_b32 v{r}, v{r+1}
                  v_permlane16_swap_b32 v{r+2}, v{r+3}
                  s_nop 0
                  v_add_f32 v{r}, v{r}, v{r+1}
                  v_add_f32 v{r+2}, v{r+2}, v{r+3}
                  s_nop 1
                  v_permlane32_swap_b32 v{r}, v{r+2}
                  s_nop 0
                  v_add_f32 v{r}, v{r}, v{r+2}""")

        def sum4():
            for k in (0, 2):
                A(f"v_pk_add_f32 {vr(8+k,2)}, {vr(8+k,2)}, {vr(12+k,2)}\nv_pk_add_f32 {vr(16+k,2)}, {vr(16+k,2)}, {vr(20+k,2)}")
            for k in (0, 2):
                A(f"v_pk_add_f32 {vr(8+k,2)}, {vr(8+k,2)}, {vr(16+k,2)}")
            A("s_nop 1")

        def poll4(name, loads, slp):
            A(f"s_mov_b32 s49, {SPIN_MAX}\n{name}:")
            for k, ld in enumerate(loads):
                A(f"buffer_load_dwordx4 {vr(8+4*k,4)}, {ld}")
            A(f"s_sub_u32 s49, s49, 1\ns_cbranch_scc1 {name}_ok\ns_waitcnt vmcnt(3)")
            mism(28, (8, 9, 10, 11))
            A("s_waitcnt vmcnt(2)")
            mism(29, (12, 13, 14, 15))
            A("s_waitcnt vmcnt(1)")
            mism(28, (16, 17, 18, 19), False)
            A("s_waitcnt vmcnt(0)")
            mism(29, (20, 21, 22, 23), False)
            A(f"""v_or_b32 v28, v28, v29
                  v_and_b32 v28, 0x3ff, v28
                  v_cmp_ne_u32 vcc, 0, v28
                  s_and_b64 exec, exec, vcc
                  s_cbranch_execz {name}_ok
                  {f"s_sleep {slp}" if slp else ""}
                  s_branch {name}
                  {name}_ok:
                  s_mov_b64 exec, -1
                  s_waitcnt vmcnt(0)""")

        A(f"""v_lshlrev_b32 v5, 4, v2
              v_lshl_add_u32 v5, v3, 11, v5
              v_lshl_add_u32 v7, v2, 2, v3
              s_lshl_b32 s61, s99, 6
              v_add_u32 v6, s61, v7
              v_lshlrev_b32 v6, 1, v6
              v_lshlrev_b32 v7, 2, v7
              v_mov_b32 v26, 0
              s_lshl_b32 s63, s99, 15
              s_add_u32 s44, s63, {W_REC2}
              s_add_u32 s45, s44, 8192
              s_add_u32 s46, s44, 16384
              s_add_u32 s47, s44, 24576
              s_lshl_b32 s61, s31, 13
              s_add_u32 s63, s44, s61
              buffer_load_short_d16_hi v26, v6, s[40:43], 0 offen
              s_lshl_b32 s61, s31, 8
              v_add_u32 v25, s61, v7
              v_mov_b32 v30, {L_CNTF}
              v_mov_b32 v31, 1""")
        poll4("L_fy_poll", [f"v5, s[52:55], s{44+t} offen offset:1024 sc1" for t in range(4)], 4)
        sum4()
        rows4(8)
        A("v_mov_b32 v27, v8")
        rne(27)
        A("""v_mul_f32 v13, 0xbfb8aa3b, v27
             v_exp_f32 v13, v13
             s_nop 0
             v_add_f32 v13, 1.0, v13
             v_rcp_f32 v13, v13
             s_nop 0
             v_mul_f32 v27, v27, v13""")
        rne(27)
        stamp(7)
        if sred:
            A(f"""s_mov_b32 s49, {SPIN_MAX}
                  L_f_poll:
                  buffer_load_dwordx4 v[8:11], v5, s[52:55], s63 offen {ffl}
                  s_sub_u32 s49, s49, 1
                  s_cbranch_scc1 L_f_ok
                  s_waitcnt vmcnt(0)""")
            mism(28, (8, 9, 10, 11))
            A("""v_and_b32 v28, 0x3ff, v28
                 v_cmp_ne_u32 vcc, 0, v28
                 s_and_b64 exec, exec, vcc
                 s_cbranch_execnz L_f_poll
                 L_f_ok:
                 s_mov_b64 exec, -1
                 s_waitcnt vmcnt(0)""")
            stamp(9)
        else:
            poll4("L_f_poll", [f"v5, s[52:55], s63 offen offset:{256*t} {ffl}" for t in range(4)], fsleep)
            stamp(9)
            sum4()
        rows4(8)
        A(f"""ds_write_b32 v25, v8 offset:{L_FRED}
              {"" if now else "s_waitcnt lgkmcnt(0)"}
              s_mov_b64 exec, 1
              ds_add_rtn_u32 v9, v30, v31
              s_mov_b64 exec, -1
              s_waitcnt lgkmcnt(0)
              v_readfirstlane_b32 s61, v9
              s_cmp_lg_u32 s61, 3
              s_cbranch_scc1 L_fin
              ds_read2st64_b32 v[8:9], v7 offset0:{L_FRED//256} offset1:{L_FRED//256+1}
              ds_read2st64_b32 v[10:11], v7 offset0:{L_FRED//256+2} offset1:{L_FRED//256+3}
              s_waitcnt lgkmcnt(0)
              v_pk_add_f32 v[8:9], v[8:9], v[10:11]
              v_add_f32 v8, v8, v9""")
        rne(8)
        A("v_mul_f32 v8, v8, v27")
        rne(8)
        A(f"""v_add_f32 v8, v8, v26
              v_cvt_pk_bf16_f32 v8, v8, v8
              buffer_store_short v8, v6, s[56:59], 0 offen {ofl}
              """)
        if not epearly:
            A(f"""s_cmp_lg_u32 s99, 0
                  s_cbranch_scc1 L_fin
                  v_mov_b32 v9, s97
                  v_mov_b32 v10, {W_EP}
                  s_mov_b64 exec, 1
                  buffer_store_dword v9, v10, s[52:55], 0 offen sc1
                  s_mov_b64 exec, -1""")
    A("L_fin:")
    if stamps:
        stamp(NST - 1)
        A(f"""s_lshl_b32 s60, s2, 3
              s_add_u32 s60, s60, s3
              s_mul_i32 s60, s60, {NST*8}
              s_add_u32 s60, s60, {W_STAMP}
              s_add_u32 s60, s26, s60
              s_addc_u32 s61, s27, 0
              v_lshlrev_b32 v2, 2, v1
              s_mov_b64 exec, {(1 << (2*NST)) - 1:#x}
              global_store_dword v2, v255, s[60:61]""")
    A("L_end:\ns_endpgm")
    body = A.text()
    head = HEADER + f"; @launch grid=(256,1,1) block=(512,1,1) lds={LDS_BYTES}\n" + DOC + '.amdgcn_target "amdgcn-amd-amdhsa--gfx950"\n'
    tail = f""".section .rodata,"a"
.p2align 6
.amdhsa_kernel {KNAME}
  .amdhsa_next_free_vgpr 256
  .amdhsa_next_free_sgpr 102
  .amdhsa_accum_offset 256
  .amdhsa_group_segment_fixed_size 0
  .amdhsa_kernarg_size 96
  .amdhsa_user_sgpr_count 2
  .amdhsa_user_sgpr_kernarg_segment_ptr 1
  .amdhsa_system_sgpr_workgroup_id_x 1
.end_amdhsa_kernel
"""
    return head + body + tail


if __name__ == "__main__":
    cfgs = eval(open(sys.argv[1]).read())
    for n, c in cfgs.items():
        open(f"k_{n}.s", "w").write(gen(**c))
    print(" ".join(f"k_{n}.s" for n in cfgs))
```

```python
import sys
KNAME = "recurrent_scan__gqa_block_cached__glu_gated_glu__decode_kernel"

def gen(nw=4, R=2, flags="nt", rot=0, rotv=0, wstride=1, order="kv", vlag=0, krows="c", prof=1, xcdmap=1, c=16, S=4096, B=0, hx=0, vx=0, vadd=0, konly=0, region=0):
    L = []; A = L.append
    A(f"; @launch grid=(256,1,1) block=({nw*64},1,1) lds=0")
    A('.amdgcn_target "amdgcn-amd-amdhsa--gfx950"')
    A(".text"); A(f".globl {KNAME}"); A(".p2align 8"); A(f".type {KNAME},@function"); A(f"{KNAME}:")
    A("s_cmp_ge_u32 s2, 256"); A("s_cbranch_scc1 L_end")
    A("s_memrealtime s[40:41]")
    A("s_load_dwordx4 s[4:7], s[0:1], 8"); A("s_load_dwordx2 s[20:21], s[0:1], 88")
    A("v_lshrrev_b32 v1, 6, v0"); A("s_nop 0"); A("v_readfirstlane_b32 s3, v1")
    A("v_and_b32 v2, 63, v0"); A("v_lshlrev_b32 v13, 4, v2")
    A("v_and_b32 v6, 15, v2"); A("v_lshrrev_b32 v5, 4, v2")
    lc = c.bit_length() - 1; lS = S.bit_length() - 1
    def rowaddr(dst, src, t):
        A(f"v_and_b32 v{t}, {c-1}, v{src}"); A(f"v_lshlrev_b32 v{t}, 8, v{t}"); A(f"v_lshrrev_b32 v{dst}, {lc}, v{src}"); A(f"v_lshlrev_b32 v{dst}, {lS}, v{dst}"); A(f"v_add_u32 v{dst}, v{dst}, v{t}")
    if krows == "g":
        rowaddr(4, 6, 12); A("v_lshl_add_u32 v4, v5, 4, v4")
        for i in range(4):
            A(f"v_lshl_add_u32 v7, v5, 2, {i}"); rowaddr(8 + i, 7, 12); A(f"v_lshl_add_u32 v{8+i}, v6, 4, v{8+i}")
        vimm = 0
    elif krows == "c":
        A("v_lshlrev_b32 v4, 8, v6"); A("v_lshl_add_u32 v4, v5, 4, v4")
        A("v_lshlrev_b32 v3, 4, v6"); A("v_lshl_add_u32 v3, v5, 10, v3"); vimm = 256
    else:
        sh = {"s4": 10, "s2": 9}[krows]
        A(f"v_lshlrev_b32 v4, {sh}, v6"); A("v_lshl_add_u32 v4, v5, 4, v4")
        A("v_lshlrev_b32 v3, 4, v6"); A(f"v_lshl_add_u32 v3, v5, {sh+2}, v3"); vimm = 1 << sh
    A("s_waitcnt lgkmcnt(0)")
    if xcdmap:
        A("s_and_b32 s16, s2, 7"); A("s_lshl_b32 s16, s16, 1"); A("s_lshr_b32 s17, s2, 3"); A("s_and_b32 s18, s17, 1")
        A("s_or_b32 s16, s16, s18"); A("s_lshr_b32 s17, s2, 4")
    else:
        A("s_lshr_b32 s16, s2, 4"); A("s_and_b32 s17, s2, 15")
    if region:
        A(f"s_mul_i32 s16, s2, {region // 256}")
    elif B:
        A("s_lshl_b32 s16, s16, 24"); A(f"s_mul_i32 s17, s17, {B}"); A("s_add_u32 s16, s16, s17")
    else:
        A("s_mov_b32 s35, s16"); A("s_lshl_b32 s16, s16, 24"); A("s_lshl_b32 s17, s17, 20"); A("s_add_u32 s16, s16, s17")
    A("s_add_u32 s8, s4, s16"); A("s_addc_u32 s9, s5, 0"); A(f"s_mov_b32 s10, {region // 256 if region else 0x1000000 - 15 * B if B else 0x100000}"); A("s_mov_b32 s11, 0x20000")
    A(f"s_xor_b32 s16, s16, {vx << 20}")
    if konly == 1:
        A("s_mov_b32 s6, s4"); A("s_mov_b32 s7, s5")
    if konly == 2:
        A("s_sub_u32 s8, s8, s4"); A("s_subb_u32 s9, s9, s5"); A("s_add_u32 s8, s8, s6"); A("s_addc_u32 s9, s9, s7")
    A("s_add_u32 s12, s6, s16"); A("s_addc_u32 s13, s7, 0"); A(f"s_mov_b32 s14, {region // 256 if region else 0x1000000 - 15 * B if B else 0x100000}"); A("s_mov_b32 s15, 0x20000")
    if krows == "g" or B:
        A("s_mov_b32 s18, s3")
    elif krows == "c":
        A(f"s_mul_i32 s16, s3, {4096*wstride}")
    else:
        A(f"s_mul_i32 s16, s3, 256" if krows == "s4" else "s_and_b32 s16, s3, 1\ns_lshl_b32 s16, s16, 8\ns_lshr_b32 s17, s3, 1\ns_lshl_b32 s17, s17, 13\ns_add_u32 s16, s16, s17")
    tpw = S // (c * 256)
    def gaddr():
        A(f"s_and_b32 s16, s18, {tpw-1}"); A(f"s_lshl_b32 s16, s16, {lc+8}"); A(f"s_lshr_b32 s17, s18, {tpw.bit_length()-1}"); A(f"s_lshl_b32 s17, s17, {lS+4-lc}"); A("s_add_u32 s16, s16, s17")
    def baddr():
        tb_ = B // 4096
        A(f"s_and_b32 s16, s18, {tb_-1}"); A("s_lshl_b32 s16, s16, 12"); A(f"s_lshr_b32 s17, s18, {tb_.bit_length()-1}"); A(f"s_mul_i32 s17, s17, {16*B}"); A("s_add_u32 s16, s16, s17")
    if B:
        baddr()
    elif krows == "g":
        gaddr()
    elif hx:
        A(f"s_mul_i32 s17, s35, {hx}"); A("s_add_u32 s16, s16, s17"); A("s_and_b32 s16, s16, 0xfffff")
    else:
        A(f"s_mul_i32 s17, s2, {rot}"); A("s_lshl_b32 s17, s17, 14"); A("s_add_u32 s16, s16, s17"); A("s_and_b32 s16, s16, 0xfffff")
    nt = (region // 256 // 4096 if region else 256) // nw; base = 16
    step = 4096 * nw if wstride == 1 else 4096
    def loads(slot, which):
        r0 = base + slot * 32 + (0 if which == "k" else 16)
        if which == "v" and vadd:
            A(f"s_add_u32 s36, s16, {vadd}"); A("s_and_b32 s36, s36, 0xfffff")
        for i in range(4):
            va, off = ("v4", 64 * i) if which == "k" else ("v3", vimm * i)
            if krows == "g" and which == "v": va = f"v{8+i}"
            A(f"buffer_load_dwordx4 v[{r0+4*i}:{r0+4*i+3}], {va}, {'s[8:11]' if which == 'k' else 's[12:15]'}, {'s16' if which == 'k' or not vadd else 's36'} offen offset:{off} {flags}")
    def adv():
        if B:
            A(f"s_add_u32 s18, s18, {nw}"); baddr()
        elif krows == "g":
            A(f"s_add_u32 s18, s18, {nw}"); gaddr()
        else:
            A(f"s_add_u32 s16, s16, {step}"); A("s_and_b32 s16, s16, 0xfffff")
    def consume(slot, which):
        r0 = base + slot * 32 + (0 if which == "k" else 16)
        for i in range(4): A(f"v_xor_b32 v14, v14, v{r0+4*i}")
    A("v_mov_b32 v14, 0"); A("v_mov_b32 v15, 0"); A("s_mov_b32 s33, 0")
    for s in range(R):
        loads(s, "k"); loads(s, "v"); adv()
    A(f"s_mov_b32 s19, {(nt - R) // R}")
    A("L_loop:")
    def body(s):
        A(f"s_waitcnt vmcnt({8*R-4})"); consume(s, "k"); loads(s, "k")
        A(f"s_waitcnt vmcnt({8*R-4})"); consume(s, "v"); loads(s, "v"); adv()
        if prof:
            A("s_memrealtime s[46:47]"); A("s_waitcnt lgkmcnt(0)"); A("s_mov_b32 m0, s33"); A("s_add_u32 s33, s33, 1"); A("v_writelane_b32 v15, s46, m0")
    for s in range(R): body(s)
    A("s_sub_u32 s19, s19, 1"); A("s_cmp_lg_u32 s19, 0"); A("s_cbranch_scc1 L_loop")
    for s in range((nt - R) % R): body(s)
    A("s_waitcnt vmcnt(0)")
    for s in range(R): consume(s, "k"); consume(s, "v")
    if prof:
        A(f"s_mul_i32 s24, s2, {nw}"); A("s_add_u32 s24, s24, s3"); A("s_lshl_b32 s24, s24, 8"); A("s_add_u32 s24, s24, 0x31000000")
        A("s_add_u32 s24, s20, s24"); A("s_addc_u32 s25, s21, 0"); A("v_lshrrev_b32 v16, 2, v13"); A("global_store_dword v16, v15, s[24:25]")
    A("s_barrier"); A("s_memrealtime s[42:43]"); A("s_waitcnt lgkmcnt(0)")
    A("s_cmp_lg_u32 s3, 0"); A("s_cbranch_scc1 L_end")
    A("s_lshl_b32 s22, s2, 5"); A("s_add_u32 s22, s22, 0x30000000")
    A("s_getreg_b32 s44, hwreg(HW_REG_XCC_ID)"); A("s_getreg_b32 s45, hwreg(HW_REG_HW_ID)")
    A("s_add_u32 s20, s20, s22"); A("s_addc_u32 s21, s21, 0")
    A("v_mov_b32 v8, s40"); A("v_mov_b32 v9, s41"); A("v_mov_b32 v10, s44"); A("v_mov_b32 v11, s45")
    A("v_mov_b32 v4, s42"); A("v_mov_b32 v5, s43"); A("v_mov_b32 v6, s42"); A("v_mov_b32 v7, s43")
    A("v_mov_b32 v1, 0"); A("v_cmp_eq_u32 vcc, 0x12345, v14"); A("s_nop 1"); A("v_cndmask_b32 v1, 0, v1, vcc")
    A("s_mov_b64 exec, 1")
    A("global_store_dwordx4 v1, v[8:11], s[20:21]"); A("global_store_dwordx4 v1, v[4:7], s[20:21] offset:16")
    A("L_end:"); A("s_endpgm")
    nv = base + R * 32
    A('.section .rodata,"a"'); A(".p2align 6"); A(f".amdhsa_kernel {KNAME}")
    A(f"  .amdhsa_next_free_vgpr {nv}"); A("  .amdhsa_next_free_sgpr 64"); A(f"  .amdhsa_accum_offset {(nv+3)//4*4}")
    A("  .amdhsa_group_segment_fixed_size 0"); A("  .amdhsa_kernarg_size 96"); A("  .amdhsa_user_sgpr_count 2")
    A("  .amdhsa_user_sgpr_kernarg_segment_ptr 1"); A("  .amdhsa_system_sgpr_workgroup_id_x 1"); A(".end_amdhsa_kernel")
    return "\n".join(L) + "\n"

if __name__ == "__main__":
    cfgs = eval(open(sys.argv[1]).read())
    for n, c in cfgs.items():
        open(f"z_{n}.s", "w").write(gen(**c))
    print(" ".join(f"z_{n}.s" for n in cfgs))
```
